```python
import torch

def _softmax(x, axis=-1):
    return torch.softmax(x, dim=axis)
def _gelu(x):
    return torch.nn.functional.gelu(x, approximate="tanh")
def _silu(x):
    return torch.nn.functional.silu(x)
def _sigmoid(x):
    return torch.sigmoid(x)
def _layernorm(x, axis=-1, eps=1e-5):
    m = x.mean(dim=axis, keepdim=True)
    v = x.var(dim=axis, keepdim=True, unbiased=False)
    return (x - m) / torch.sqrt(v + eps)
def _scatter_add(tgt, idx, src, axis=0):
    return tgt.clone().index_add_(axis, idx, src)
def _segment_sum(src, seg, n):
    out = torch.zeros((n,) + src.shape[1:], dtype=src.dtype)
    return out.index_add_(0, seg, src)
def _pad(x, pw):
    flat = tuple(v for pair in reversed(pw) for v in pair)
    return torch.nn.functional.pad(x, flat)

kernel_name = 'standalone__cross_network_dcn__recsys'

def setup_inputs():

    _w = (lambda a: (lambda t: t.to(torch.bfloat16) if t.is_floating_point() else t)(torch.as_tensor(a)))
    B, F, D, L = 16384, 26, 16, 6
    Din = min(F * D, 1024)
    return {
        "x0": _w((lambda *s: torch.randn(*s, dtype=torch.bfloat16) * 0.05)(B, Din)),
        "ws": _w((lambda *s: torch.randn(*s, dtype=torch.bfloat16) * 0.8)(L, Din, Din) * (Din ** -0.5)),
        "bs": _w((lambda *s: torch.randn(*s, dtype=torch.bfloat16) * 3.2)(L, Din) * 0.01),
    }

def reference(x0, ws, bs):
    x = x0
    L = ws.shape[0]
    for l in range(L):
        proj = torch.einsum('bd,de->be', x, ws[l]) + bs[l]
        x = x0 * proj + x
    return x
```

```python
import sys, os

NO_MFMA = os.environ.get('NO_MFMA')
NO_LOAD = os.environ.get('NO_LOAD')
STAMP = os.environ.get('STAMP')
TSTAMP = os.environ.get('TSTAMP')
NO_PREFETCH = os.environ.get('NO_PREFETCH')
NO_ROT = os.environ.get('NO_ROT')
PRIME0 = int(os.environ.get('PRIME0', '6'))
CAP = int(os.environ.get('CAP', '2'))

NL = 6
KS = 13
NT = 7
XSTR = 864
RT = 16 * XSTR
RT2 = 2 * RT
BIAS_LDS = 4 * RT2
LDS_TOTAL = BIAS_LDS + 10240
ROWB = 832
TILEB = KS * 1024
LAYERB = 26 * TILEB
WF_BYTES = NL * LAYERB
NFRAG = NL * 26 * KS
PREP_WG = NFRAG // 4
MASK_S = 's50'

V_L16 = 1
V_XRD = [2, 3]
V_XD = [4, 5]
V_BIAS = 6
V_WA = 7
V_DA = [[8, 9], [10, 11]]
V_STG = 12
V_GRW = 13
V_BT = 240
ACC = [16, 32]
BIASR = [48, 52]
XR = [56, 64]
TMP = 72
X0F = 80
WV = 184
XFR_A = 0
WA = 208
S_SOFFK = 64
S_TILEOFF = 77
S_COLW = 84
S_BIASOFF = 91


def wslot(par, p):
    s = par * KS + p
    if s < 12:
        b = WA + 4 * s
        return f"a[{b}:{b+3}]"
    b = WV + 4 * (s - 12)
    assert b + 3 <= 239
    return f"v[{b}:{b+3}]"


def xfrag(s, mt):
    b = XFR_A + (s * 4 + mt) * 4
    return f"a[{b}:{b+3}]"


def unit(j, mt):
    return mt if j == 0 else 2 + 4 * (j - 1) + mt


def nmt_of(j):
    return 2 if j == 0 else 4


class Em:
    def __init__(self):
        self.lines = []
        self.vm = []
        self.lg = []
        self.n = 0

    def raw(self, s):
        self.lines.append(s)

    def i(self, s):
        self.n += 1
        if NO_MFMA and s.startswith('v_mfma'):
            return
        if NO_LOAD and s.startswith('buffer_load_dwordx4'):
            return
        self.lines.append("  " + s)

    def vmem(self, s, tag):
        self.i(s)
        self.vm.append(tag)
        assert len(self.vm) <= 63

    def lds(self, s, tag):
        self.i(s)
        self.lg.append(tag)

    def wait(self, vmtag=None, lgtag=None, lg_all=False):
        parts = []
        if vmtag is not None and vmtag in self.vm:
            idx = len(self.vm) - 1 - self.vm[::-1].index(vmtag)
            n = len(self.vm) - 1 - idx
            parts.append(f"vmcnt({n})")
            self.vm = self.vm[idx + 1:]
        if lg_all:
            if self.lg:
                parts.append("lgkmcnt(0)")
                self.lg = []
        elif lgtag is not None:
            tags = lgtag if isinstance(lgtag, list) else [lgtag]
            idx = -1
            for t in tags:
                if t in self.lg:
                    idx = max(idx, len(self.lg) - 1 - self.lg[::-1].index(t))
            if idx >= 0:
                n = len(self.lg) - 1 - idx
                n = min(n, 15)
                parts.append(f"lgkmcnt({n})")
                self.lg = self.lg[len(self.lg) - n:] if n else []
        if parts:
            self.i("s_waitcnt " + " ".join(parts))
            return 1
        return 0


def stamp_lines():
    return ["  s_memtime s[60:61]", "  s_waitcnt lgkmcnt(0)", "  v_mov_b32 v14, s60", "  v_mov_b32 v15, s61",
            "  buffer_store_dwordx2 v[14:15], v255, s[56:59], s62 offen", "  s_add_u32 s62, s62, 8"]


def pre_ops(j, par, rbuf):
    ops = [("v", f"v_add_u32 v{V_DA[par][0]}, s{S_COLW+j}, v{V_XD[0]}")]
    if nmt_of(j) == 4:
        ops.append(("v", f"v_add_u32 v{V_DA[par][1]}, s{S_COLW+j}, v{V_XD[1]}"))
    for mt in range(nmt_of(j)):
        xr = XR[par] + 2 * mt
        ops.append(("r", (f"ds_read_b64 v[{xr}:{xr+1}], v{V_DA[par][mt>>1]} offset:{(mt&1)*RT2 + rbuf*RT}", ("xr", j, mt))))
    return ops


def post_ops(j, par, wbuf, mts):
    ops = [("w", [("xr", j, mt) for mt in range(nmt_of(j))])]
    for mt in mts:
        x0 = X0F + 4 * unit(j, mt)
        xr = XR[par] + 2 * mt
        a = ACC[par] + 4 * mt
        t = TMP + 4 * (mt & 1)
        ops.append(("v", f"v_lshlrev_b32 v{t+0}, 16, v{xr}"))
        ops.append(("v", f"v_and_b32 v{t+1}, {MASK_S}, v{xr}"))
        ops.append(("v", f"v_lshlrev_b32 v{t+2}, 16, v{xr+1}"))
        ops.append(("v", f"v_and_b32 v{t+3}, {MASK_S}, v{xr+1}"))
        for r in range(4):
            ops.append(("v", f"v_fma_f32 v{a+r}, v{x0+r}, v{a+r}, v{t+r}"))
        ops.append(("v", f"v_cvt_pk_bf16_f32 v{xr}, v{a}, v{a+1}"))
        ops.append(("v", f"v_cvt_pk_bf16_f32 v{xr+1}, v{a+2}, v{a+3}"))
        ops.append(("l", f"ds_write_b64 v{V_DA[par][mt>>1]}, v[{xr}:{xr+1}] offset:{(mt&1)*RT2 + wbuf*RT}"))
    return ops


def bias_ops(j, par, bias_off):
    b = BIASR[par]
    return [("v", f"v_add_u32 v{V_BT}, s{S_BIASOFF+j}, v{V_BIAS}"),
            ("r", (f"ds_read_b128 v[{b}:{b+3}], v{V_BT} offset:{bias_off}", ("b", j)))]


class Sched:
    def __init__(self, em):
        self.em = em
        self.hi = []
        self.q = []
        self.forced = 0

    def emit(self, op):
        em = self.em
        k, s = op
        if k == "v":
            em.i(s)
        elif k == "l":
            em.lds(s, "xw")
        elif k == "r":
            em.lds(s[0], s[1])
        elif k == "w":
            assert not any(e[0] == "r" and e[1][1] in s for e in self.hi)
            assert not any(e[1][0] == "r" and e[1][1][1] in s for e in self.q)
            return em.wait(lgtag=s)
        else:
            raise ValueError(k)
        return 1

    def gap(self, cap):
        while cap > 0:
            if self.hi:
                cap -= self.emit(self.hi.pop(0))
            elif self.q and self.q[0][0] <= self.em.n:
                cap -= self.emit(self.q.pop(0)[1])
            else:
                break

    def _force_q(self):
        rdy, op = self.q.pop(0)[:2]
        d = rdy - self.em.n
        while d > 0:
            k = min(d, 8)
            self.em.i(f"s_nop {k-1}")
            self.em.n += k - 1
            d -= k
        self.emit(op)

    def ensure_tags(self, tags):
        def pending(lst, get):
            return [i for i, e in enumerate(lst) if get(e)[0] == "r" and get(e)[1][1] in tags]
        p = pending(self.hi, lambda e: e)
        if p:
            self.forced += p[-1] + 1
            for _ in range(p[-1] + 1):
                self.emit(self.hi.pop(0))
        p = pending(self.q, lambda e: e[1])
        if p:
            self.forced += p[-1] + 1
            for _ in range(p[-1] + 1):
                self._force_q()

    def ensure_post(self, slot):
        p = [i for i, e in enumerate(self.q) if len(e) > 2 and e[2] <= slot]
        if p:
            self.forced += p[-1] + 1
            for _ in range(p[-1] + 1):
                self._force_q()

    def flush(self):
        while self.hi:
            self.emit(self.hi.pop(0))
        while self.q:
            self._force_q()


def gen_layer(em, seq0, lpar, bias_off):
    rbuf = lpar
    wbuf = 1 - lpar
    sc = Sched(em)

    def xread(s, mt):
        return ("r", (f"ds_read_b128 {xfrag(s, mt)}, v{V_XRD[mt>>1]} offset:{(mt&1)*RT2 + rbuf*RT + s*64}", ("x", s, mt)))

    par0 = seq0 & 1
    first = bias_ops(0, par0, bias_off) + [xread(s, mt) for s in range(KS) for mt in (0, 1)]
    PRE = 2 + 12
    for op in first[:PRE]:
        sc.emit(op)
    sc.hi = (first[PRE:] + pre_ops(0, par0, rbuf) + bias_ops(1, 1 - par0, bias_off)
             + [xread(s, mt) for s in range(KS) for mt in (2, 3)])
    for j in range(NT):
        seq = seq0 + j
        par = seq & 1
        jn = (j + 2) % NT
        passes = [list(range(nmt_of(j)))] if j < 6 else [[0, 1], [2, 3]]
        if j >= 1:
            sc.q += [(0, op) for op in pre_ops(j, par, rbuf)]
            if j + 1 < NT:
                sc.q += [(0, op) for op in bias_ops(j + 1, 1 - par, bias_off)]
        sc.ensure_post(j - 2)
        for pi, mts in enumerate(passes):
            lastpass = pi == len(passes) - 1
            used = 0
            if lastpass:
                if j + 2 == NT:
                    em.i(f"s_add_u32 s34, s34, {LAYERB}")
                em.i(f"s_add_u32 s33, s34, s{S_TILEOFF+jn}")
                em.i(f"v_add_u32 v{V_WA}, s33, v{V_L16}")
            for s in range(KS):
                lg = []
                if j <= 1:
                    lg = [("x", s, m) for m in mts]
                if s == 0:
                    lg.append(("b", j))
                vt = None
                if pi == 0 and s % 2 == 0:
                    vt = ("W", seq, min(s + 1, KS - 1))
                sc.ensure_tags(lg)
                em.wait(vmtag=vt, lgtag=lg)
                for mt in mts:
                    a = ACC[par] + 4 * mt
                    b = BIASR[par]
                    c = f"v[{b}:{b+3}]" if s == 0 else f"v[{a}:{a+3}]"
                    em.i(f"v_mfma_f32_16x16x32_bf16 v[{a}:{a+3}], {wslot(par, s)}, {xfrag(s, mt)}, {c}")
                    cap = CAP
                    if mt == mts[-1]:
                        if lastpass:
                            em.vmem(f"buffer_load_dwordx4 {wslot(par, s)}, v{V_WA}, s[24:27], s{S_SOFFK+s} offen", ("W", seq + 2, s))
                            cap -= 1
                        if (pi == 0 and s % 2 == 1) or j <= 1:
                            cap -= 1
                    sc.gap(cap)
            rdy = em.n + 9
            sc.q += [(rdy, op, j) for op in post_ops(j, par, wbuf, mts)]
        if TSTAMP:
            em.wait(lg_all=True)
            for l in stamp_lines():
                em.raw(l)
    if os.environ.get('VERBOSE'):
        print("forced", sc.forced, "left at end", len(sc.q), file=sys.stderr)
    sc.flush()
    em.wait(lg_all=True)
    if STAMP:
        for l in stamp_lines():
            em.raw(l)
    em.i("s_barrier")


def gen_main_body():
    em = Em()
    em.vm = [("W", q, s) for q in range(2) for s in range(KS)]
    em.raw("L_loop:")
    gen_layer(em, 0, 0, 0)
    gen_layer(em, NT, 1, 1664)
    assert em.vm == [("W", 2 * NT + q, s) for q in range(2) for s in range(KS)], em.vm
    assert not em.lg
    em.i(f"v_add_u32 v{V_BIAS}, {2*1664}, v{V_BIAS}")
    em.i("s_sub_u32 s35, s35, 1")
    em.i("s_cmp_lg_u32 s35, 0")
    em.i("s_cbranch_scc1 L_loop")
    em.i("s_mov_b32 exec_hi, 0x000fffff")
    for r in range(16):
        off = f" offset:{r*XSTR}" if r else ""
        em.i(f"ds_read_b128 a[{4*r}:{4*r+3}], v{V_STG}{off}")
    for r in range(16):
        if r % 4 == 0:
            em.i(f"s_waitcnt lgkmcnt({12 - r})")
        so = "0" if r < 4 else f"s{50 + (r >> 2)}"
        imm = (r & 3) * ROWB
        off = f" offset:{imm}" if imm else ""
        em.i(f"buffer_store_dwordx4 a[{4*r}:{4*r+3}], v{V_GRW}, s[20:23], {so} offen{off}")
    if STAMP:
        em.i("s_mov_b32 exec_hi, -1")
        em.i("s_waitcnt vmcnt(0)")
        for l in stamp_lines():
            em.raw(l)
        for l in stamp_lines():
            em.raw(l.replace('s_memtime', 's_memrealtime'))
    return em.lines


def gen_prologue():
    L = []
    A = L.append
    A("  s_cmp_ge_u32 s2, 256")
    A("  s_cbranch_scc1 L_main_end")
    A("  s_load_dwordx8 s[4:11], s[0:1], 0")
    A("  s_load_dwordx2 s[14:15], s[0:1], 40")
    A("  v_lshrrev_b32 v26, 6, v0")
    A("  v_and_b32 v27, 63, v0")
    A("  v_and_b32 v28, 15, v0")
    A("  v_readfirstlane_b32 s3, v26")
    A("  v_lshrrev_b32 v29, 4, v27")
    A(f"  v_lshlrev_b32 v{V_L16}, 4, v27")
    A("  s_mul_i32 s49, s3, 13312")
    A(f"  v_add_u32 v{V_GRW}, s49, v{V_L16}")
    A("  v_lshlrev_b32 v23, 2, v0")
    A("  v_add_u32 v25, 4096, v23")
    A("  s_mov_b32 s51, 3328")
    A("  s_mov_b32 s52, 6656")
    A("  s_mov_b32 s53, 9984")
    A("  s_mul_i32 s33, s2, 53248")
    A("  s_waitcnt lgkmcnt(0)")
    A("  s_add_u32 s16, s4, s33")
    A("  s_addc_u32 s17, s5, 0")
    A("  s_mov_b32 s18, 53248")
    A("  s_mov_b32 s19, 0x00020000")
    A("  s_mov_b32 s28, s8")
    A("  s_mov_b32 s29, s9")
    A("  s_mov_b32 s30, 4992")
    A("  s_mov_b32 s31, 0x00020000")
    if STAMP:
        A("  s_lshl_b32 s36, s2, 2")
        A("  s_add_u32 s36, s36, s3")
        A("  s_lshl_b32 s36, s36, 10")
        A("  s_add_u32 s36, s36, 0x400000")
        A("  s_add_u32 s56, s14, s36")
        A("  s_addc_u32 s57, s15, 0")
        A("  s_mov_b32 s58, 1024")
        A("  s_mov_b32 s59, 0x00020000")
        A("  s_mov_b32 s62, 0")
        A("  v_mov_b32 v255, 0")
        L.extend([l.replace('s_memtime', 's_memrealtime') for l in stamp_lines()])
        L.extend(stamp_lines())
    A("  s_mov_b32 exec_hi, 0x000fffff")
    for r in range(16):
        so = "0" if r < 4 else f"s{50 + (r >> 2)}"
        imm = (r & 3) * ROWB
        off = f" offset:{imm}" if imm else ""
        A(f"  buffer_load_dwordx4 a[{4*r}:{4*r+3}], v{V_GRW}, s[16:19], {so} offen{off}")
    A("  s_mov_b32 exec_hi, -1")
    for r in range(5):
        off = f" offset:{r*1024}" if 0 < r < 4 else ""
        va = "v23" if r < 4 else "v25"
        A(f"  buffer_load_dword v{32+r}, {va}, s[28:31], 0 offen{off}")
    A("  s_add_u32 s20, s10, s33")
    A("  s_addc_u32 s21, s11, 0")
    A("  s_mov_b32 s22, 53248")
    A("  s_mov_b32 s23, 0x00020000")
    A("  s_mov_b32 s24, s14")
    A("  s_mov_b32 s25, s15")
    A(f"  s_mov_b32 s26, {WF_BYTES}")
    A("  s_mov_b32 s27, 0x00020000")
    A("  s_mov_b32 s50, 0xffff0000")
    A("  s_mov_b32 s35, 3")
    A("  s_mov_b32 s34, 0")
    if NO_ROT:
        A("  s_mov_b32 s36, 0")
        A("  s_mov_b32 s37, 0")
    else:
        A("  s_lshr_b32 s38, s2, 3")
        A("  s_and_b32 s38, s38, 31")
        A("  s_mul_i32 s39, s38, 20")
        A("  s_lshr_b32 s39, s39, 8")
        A("  s_mul_i32 s39, s39, 13")
        A("  s_sub_u32 s36, s38, s39")
        A("  s_mul_i32 s39, s38, 43")
        A("  s_lshr_b32 s39, s39, 8")
        A("  s_mul_i32 s39, s39, 6")
        A("  s_sub_u32 s37, s38, s39")
        assert all((i * 20) >> 8 == i // 13 and (i * 43) >> 8 == i // 6 for i in range(32))
    for p in range(KS):
        A(f"  s_add_u32 s38, s36, {p}")
        A("  s_sub_u32 s39, s38, 13")
        A("  s_cmp_ge_u32 s38, 13")
        A("  s_cselect_b32 s38, s39, s38")
        A(f"  s_lshl_b32 s{S_SOFFK+p}, s38, 10")
    A("  s_mul_i32 s40, s3, 6")
    for j in range(NT):
        if j >= 1:
            A(f"  s_add_u32 s38, s37, {j-1}")
            A("  s_sub_u32 s39, s38, 6")
            A("  s_cmp_ge_u32 s38, 6")
            A("  s_cselect_b32 s38, s39, s38")
            A("  s_add_u32 s38, s38, s40")
        else:
            A("  s_lshr_b32 s38, s3, 1")
            A("  s_add_u32 s38, s38, 24")
        A(f"  s_mul_i32 s{S_TILEOFF+j}, s38, {TILEB}")
        A(f"  s_lshl_b32 s{S_BIASOFF+j}, s38, 6")
        A("  s_lshr_b32 s39, s38, 1")
        A("  s_add_u32 s39, s39, 13")
        A("  s_sub_u32 s39, s39, s36")
        A("  s_sub_u32 s41, s39, 13")
        A("  s_cmp_ge_u32 s39, 13")
        A("  s_cselect_b32 s39, s41, s39")
        A("  s_lshl_b32 s39, s39, 6")
        A("  s_and_b32 s38, s38, 1")
        A("  s_lshl_b32 s38, s38, 5")
        A(f"  s_add_u32 s{S_COLW+j}, s39, s38")
        if j == 1:
            A(f"  v_add_u32 v{V_WA}, s{S_TILEOFF}, v{V_L16}")
            A(f"  v_add_u32 v31, s{S_TILEOFF+1}, v{V_L16}")
            prime = [(q, s) for q in range(2) for s in range(KS)]

            def prime_load(q, s):
                va = f"v{V_WA}" if q == 0 else "v31"
                return f"  buffer_load_dwordx4 {wslot(q, s)}, {va}, s[24:27], s{S_SOFFK+s} offen"
            for (q, s) in prime[:PRIME0]:
                A(prime_load(q, s))
            rest = prime[PRIME0:]
    A(f"  v_mul_u32_u24 v16, {XSTR}, v28")
    A("  v_lshl_add_u32 v30, v29, 4, v16")
    A("  v_lshl_add_u32 v18, v29, 3, v16")
    A("  s_and_b32 s38, s3, 1")
    A(f"  s_mul_i32 s45, s38, {2*RT2}")
    A(f"  s_sub_u32 s54, {2*RT2}, s45")
    A(f"  v_add_u32 v{V_XRD[0]}, s45, v30")
    A(f"  v_add_u32 v{V_XRD[1]}, s54, v30")
    A(f"  v_add_u32 v{V_XD[0]}, s45, v18")
    A(f"  v_add_u32 v{V_XD[1]}, s54, v18")
    A("  v_lshlrev_b32 v20, 4, v29")
    A(f"  v_add_u32 v{V_BIAS}, {BIAS_LDS}, v20")
    A("  v_lshrrev_b32 v17, 2, v27")
    A("  v_add_u32 v17, 13, v17")
    A("  v_subrev_u32 v17, s36, v17")
    A("  v_subrev_u32 v19, 13, v17")
    A("  v_cmp_le_u32 vcc, 13, v17")
    A("  s_nop 1")
    A("  v_cndmask_b32 v17, v17, v19, vcc")
    A("  v_and_b32 v19, 3, v27")
    A("  v_lshlrev_b32 v19, 4, v19")
    A("  v_lshl_add_u32 v17, v17, 6, v19")
    A(f"  s_mul_i32 s49, s3, {RT2}")
    A(f"  v_add_u32 v{V_STG}, s49, v17")
    A("  v_lshlrev_b32 v24, 3, v0")
    A(f"  v_add_u32 v24, {BIAS_LDS}, v24")
    if STAMP:
        L.extend(stamp_lines())
        A(f"  s_waitcnt vmcnt({PRIME0+5+1})")
        L.extend(stamp_lines())
        A(f"  s_waitcnt vmcnt({PRIME0+2})")
    else:
        A(f"  s_waitcnt vmcnt({PRIME0})")
    A("  s_mov_b32 exec_hi, 0x000fffff")
    for r in range(16):
        off = f" offset:{r*XSTR}" if r else ""
        A(f"  ds_write_b128 v{V_STG}, a[{4*r}:{4*r+3}]{off}")
    A("  s_mov_b32 exec_hi, -1")
    for r in range(5):
        A(f"  v_lshlrev_b32 v{40+2*r}, 16, v{32+r}")
        A(f"  v_and_b32 v{41+2*r}, s50, v{32+r}")
        off = f" offset:{r*2048}" if r else ""
        A(f"  ds_write_b64 v24, v[{40+2*r}:{41+2*r}]{off}")
    A("  s_waitcnt lgkmcnt(0)")
    if STAMP:
        L.extend(stamp_lines())
    A("  s_barrier")
    for j in range(NT):
        A(f"  v_add_u32 v{V_DA[0][0]}, s{S_COLW+j}, v{V_XD[0]}")
        if nmt_of(j) == 4:
            A(f"  v_add_u32 v{V_DA[0][1]}, s{S_COLW+j}, v{V_XD[1]}")
        for mt in range(nmt_of(j)):
            x = X0F + 4 * unit(j, mt)
            off = f" offset:{RT2}" if (mt & 1) else ""
            A(f"  ds_read_b64 v[{x+2}:{x+3}], v{V_DA[0][mt>>1]}{off}")
        for _ in range(3):
            if rest:
                A(prime_load(*rest.pop(0)))
    assert not rest
    A("  s_waitcnt lgkmcnt(0)")
    for u in range(26):
        x = X0F + 4 * u
        A(f"  v_lshlrev_b32 v{x}, 16, v{x+2}")
        A(f"  v_and_b32 v{x+1}, s50, v{x+2}")
        A(f"  v_lshlrev_b32 v{x+2}, 16, v{x+3}")
        A(f"  v_and_b32 v{x+3}, s50, v{x+3}")
    if STAMP:
        L.extend(stamp_lines())
    return L


def magic(d, maxn):
    for sh in range(8, 31):
        m = -(-(1 << sh) // d)
        if all((n * m) >> sh == n // d for n in range(maxn)) and maxn * m < (1 << 32):
            return m, sh
    raise ValueError


def gen_prep():
    L = []
    A = L.append
    A(f"  s_cmp_ge_u32 s2, {PREP_WG}")
    A("  s_cbranch_scc1 L_prep_end")
    A("  s_load_dwordx4 s[4:7], s[0:1], 0")
    A("  s_load_dwordx2 s[8:9], s[0:1], 40")
    A("  v_lshrrev_b32 v1, 6, v0")
    A("  v_and_b32 v2, 63, v0")
    A("  v_and_b32 v3, 15, v0")
    A("  v_readfirstlane_b32 s3, v1")
    A("  v_lshrrev_b32 v4, 4, v2")
    A("  s_lshl_b32 s10, s2, 2")
    A("  s_add_u32 s10, s10, s3")
    m, sh = magic(26 * 13, NFRAG)
    A(f"  s_mul_i32 s11, s10, {m}")
    A(f"  s_lshr_b32 s11, s11, {sh}")
    A(f"  s_mul_i32 s12, s11, {26*13}")
    A("  s_sub_u32 s12, s10, s12")
    m, sh = magic(13, 26 * 13)
    A(f"  s_mul_i32 s13, s12, {m}")
    A(f"  s_lshr_b32 s13, s13, {sh}")
    A("  s_mul_i32 s14, s13, 13")
    A("  s_sub_u32 s14, s12, s14")
    A("  s_mul_i32 s17, s11, 346112")
    A(f"  s_mul_i32 s18, s14, {32*ROWB}")
    A("  s_add_u32 s17, s17, s18")
    A("  s_lshl_b32 s18, s13, 5")
    A("  s_add_u32 s17, s17, s18")
    A(f"  v_mul_u32_u24 v5, {8*ROWB}, v4")
    A("  v_lshl_add_u32 v5, v3, 1, v5")
    A(f"  v_add_u32 v6, {4*ROWB}, v5")
    A("  v_lshlrev_b32 v7, 4, v2")
    A("  s_lshl_b32 s19, s10, 10")
    A("  s_waitcnt lgkmcnt(0)")
    A("  s_mov_b32 s20, s6")
    A("  s_mov_b32 s21, s7")
    A(f"  s_mov_b32 s22, {6*346112}")
    A("  s_mov_b32 s23, 0x00020000")
    A("  s_mov_b32 s24, s8")
    A("  s_mov_b32 s25, s9")
    A(f"  s_mov_b32 s26, {WF_BYTES}")
    A("  s_mov_b32 s27, 0x00020000")
    for jj in range(8):
        va = "v5" if jj < 4 else "v6"
        imm = (jj & 3) * ROWB
        off = f" offset:{imm}" if imm else ""
        A(f"  buffer_load_ushort v{16 + jj}, {va}, s[20:23], s17 offen{off}")
    npf = 0
    if not NO_PREFETCH:
        A("  s_mov_b32 s28, s4")
        A("  s_mov_b32 s29, s5")
        A(f"  s_mov_b32 s30, {16384*ROWB}")
        A("  s_mov_b32 s31, 0x00020000")
        A("  s_mul_i32 s15, s10, 7168")
        A("  s_add_u32 s16, s15, 4096")
        npf = 7
        for q in range(npf):
            so = "s15" if q < 4 else "s16"
            imm = (q & 3) * 1024
            off = f" offset:{imm}" if imm else ""
            A(f"  buffer_load_dwordx4 v[{24+4*q}:{27+4*q}], v7, s[28:31], {so} offen{off}")
    A(f"  s_waitcnt vmcnt({npf})")
    for q in range(4):
        A(f"  v_lshl_or_b32 v{8+q}, v{17+2*q}, 16, v{16+2*q}")
    A("  buffer_store_dwordx4 v[8:11], v7, s[24:27], s19 offen")
    A("L_prep_end:")
    A("  s_endpgm")
    return L


HEADER = open('standalone__cross_network_dcn__recsys.s.ref').read().split('; Override')[0]


def main(out):
    o = []
    o.append(HEADER.rstrip('\n'))
    o.append(f"; @launch kernel=dcn_prep_kernel grid=({PREP_WG},1,1) block=(256,1,1) lds=0")
    o.append(f"; @launch kernel=standalone__cross_network_dcn__recsys_kernel grid=(256,1,1) block=(256,1,1) lds={LDS_TOTAL}")
    o.append('.amdgcn_target "amdgcn-amd-amdhsa--gfx950"')
    o.append(".text")
    o.append(".globl dcn_prep_kernel")
    o.append(".p2align 8")
    o.append(".type dcn_prep_kernel,@function")
    o.append("dcn_prep_kernel:")
    o += gen_prep()
    o.append(".globl standalone__cross_network_dcn__recsys_kernel")
    o.append(".p2align 8")
    o.append(".type standalone__cross_network_dcn__recsys_kernel,@function")
    o.append("standalone__cross_network_dcn__recsys_kernel:")
    o += gen_prologue()
    o += gen_main_body()
    o.append("L_main_end:")
    o.append("  s_endpgm")
    o.append('.section .rodata,"a"')
    o.append(".p2align 6")
    o.append(""".amdhsa_kernel dcn_prep_kernel
  .amdhsa_next_free_vgpr 56
  .amdhsa_next_free_sgpr 32
  .amdhsa_accum_offset 56
  .amdhsa_group_segment_fixed_size 0
  .amdhsa_kernarg_size 48
  .amdhsa_user_sgpr_count 2
  .amdhsa_user_sgpr_kernarg_segment_ptr 1
  .amdhsa_system_sgpr_workgroup_id_x 1
.end_amdhsa_kernel
.p2align 6
.amdhsa_kernel standalone__cross_network_dcn__recsys_kernel
  .amdhsa_next_free_vgpr 512
  .amdhsa_next_free_sgpr 102
  .amdhsa_accum_offset 256
  .amdhsa_group_segment_fixed_size 0
  .amdhsa_kernarg_size 48
  .amdhsa_user_sgpr_count 2
  .amdhsa_user_sgpr_kernarg_segment_ptr 1
  .amdhsa_system_sgpr_workgroup_id_x 1
.end_amdhsa_kernel""")
    open(out, 'w').write("\n".join(o) + "\n")


if __name__ == "__main__":
    main(sys.argv[1] if len(sys.argv) > 1 else 'standalone__cross_network_dcn__recsys.s')
```

```python
import sys, os

NO_MFMA = os.environ.get('NO_MFMA')
NO_LOAD = os.environ.get('NO_LOAD')
STAMP = os.environ.get('STAMP')
TSTAMP = os.environ.get('TSTAMP')
NO_PREFETCH = os.environ.get('NO_PREFETCH')
NO_ROT = os.environ.get('NO_ROT')
PRIME0 = int(os.environ.get('PRIME0', '6'))
CAP = int(os.environ.get('CAP', '2'))
WSC = '' if os.environ.get('NO_SC1') else ' sc1'
POLL_MAX = 4000

NL = 6
KS = 13
NT = 7
XSTR = 864
RT = 16 * XSTR
RT2 = 2 * RT
BIAS_LDS = 4 * RT2
LDS_TOTAL = BIAS_LDS + 10240
ROWB = 832
TILEB = KS * 1024
LAYERB = 26 * TILEB
WF_BYTES = NL * LAYERB
NFRAG = NL * 26 * KS
PREP_WG = NFRAG // 4
MASK_S = 's50'

V_L16 = 1
V_XRD = [2, 3]
V_XD = [4, 5]
V_BIAS = 6
V_WA = 7
V_DA = [[8, 9], [10, 11]]
V_STG = 12
V_GRW = 13
V_BT = 240
ACC = [16, 32]
BIASR = [48, 52]
XR = [56, 64]
TMP = 72
X0F = 80
WV = 184
XFR_A = 0
WA = 208
S_SOFFK = 64
S_TILEOFF = 77
S_COLW = 84
S_BIASOFF = 91


def wslot(par, p):
    s = par * KS + p
    if s < 12:
        b = WA + 4 * s
        return f"a[{b}:{b+3}]"
    b = WV + 4 * (s - 12)
    assert b + 3 <= 239
    return f"v[{b}:{b+3}]"


def xfrag(s, mt):
    b = XFR_A + (s * 4 + mt) * 4
    return f"a[{b}:{b+3}]"


def unit(j, mt):
    return mt if j == 0 else 2 + 4 * (j - 1) + mt


def nmt_of(j):
    return 2 if j == 0 else 4


class Em:
    def __init__(self):
        self.lines = []
        self.vm = []
        self.lg = []
        self.n = 0

    def raw(self, s):
        self.lines.append(s)

    def i(self, s):
        self.n += 1
        if NO_MFMA and s.startswith('v_mfma'):
            return
        if NO_LOAD and s.startswith('buffer_load_dwordx4'):
            return
        self.lines.append("  " + s)

    def vmem(self, s, tag):
        self.i(s)
        self.vm.append(tag)
        assert len(self.vm) <= 63

    def lds(self, s, tag):
        self.i(s)
        self.lg.append(tag)

    def wait(self, vmtag=None, lgtag=None, lg_all=False):
        parts = []
        if vmtag is not None and vmtag in self.vm:
            idx = len(self.vm) - 1 - self.vm[::-1].index(vmtag)
            n = len(self.vm) - 1 - idx
            parts.append(f"vmcnt({n})")
            self.vm = self.vm[idx + 1:]
        if lg_all:
            if self.lg:
                parts.append("lgkmcnt(0)")
                self.lg = []
        elif lgtag is not None:
            tags = lgtag if isinstance(lgtag, list) else [lgtag]
            idx = -1
            for t in tags:
                if t in self.lg:
                    idx = max(idx, len(self.lg) - 1 - self.lg[::-1].index(t))
            if idx >= 0:
                n = len(self.lg) - 1 - idx
                n = min(n, 15)
                parts.append(f"lgkmcnt({n})")
                self.lg = self.lg[len(self.lg) - n:] if n else []
        if parts:
            self.i("s_waitcnt " + " ".join(parts))
            return 1
        return 0


def stamp_lines():
    return ["  s_memtime s[60:61]", "  s_waitcnt lgkmcnt(0)", "  v_mov_b32 v14, s60", "  v_mov_b32 v15, s61",
            "  buffer_store_dwordx2 v[14:15], v255, s[56:59], s62 offen", "  s_add_u32 s62, s62, 8"]


def pre_ops(j, par, rbuf):
    ops = [("v", f"v_add_u32 v{V_DA[par][0]}, s{S_COLW+j}, v{V_XD[0]}")]
    if nmt_of(j) == 4:
        ops.append(("v", f"v_add_u32 v{V_DA[par][1]}, s{S_COLW+j}, v{V_XD[1]}"))
    for mt in range(nmt_of(j)):
        xr = XR[par] + 2 * mt
        ops.append(("r", (f"ds_read_b64 v[{xr}:{xr+1}], v{V_DA[par][mt>>1]} offset:{(mt&1)*RT2 + rbuf*RT}", ("xr", j, mt))))
    return ops


def post_ops(j, par, wbuf, mts):
    ops = [("w", [("xr", j, mt) for mt in range(nmt_of(j))])]
    for mt in mts:
        x0 = X0F + 4 * unit(j, mt)
        xr = XR[par] + 2 * mt
        a = ACC[par] + 4 * mt
        t = TMP + 4 * (mt & 1)
        ops.append(("v", f"v_lshlrev_b32 v{t+0}, 16, v{xr}"))
        ops.append(("v", f"v_and_b32 v{t+1}, {MASK_S}, v{xr}"))
        ops.append(("v", f"v_lshlrev_b32 v{t+2}, 16, v{xr+1}"))
        ops.append(("v", f"v_and_b32 v{t+3}, {MASK_S}, v{xr+1}"))
        for r in range(4):
            ops.append(("v", f"v_fma_f32 v{a+r}, v{x0+r}, v{a+r}, v{t+r}"))
        ops.append(("v", f"v_cvt_pk_bf16_f32 v{xr}, v{a}, v{a+1}"))
        ops.append(("v", f"v_cvt_pk_bf16_f32 v{xr+1}, v{a+2}, v{a+3}"))
        ops.append(("l", f"ds_write_b64 v{V_DA[par][mt>>1]}, v[{xr}:{xr+1}] offset:{(mt&1)*RT2 + wbuf*RT}"))
    return ops


def bias_ops(j, par, bias_off):
    b = BIASR[par]
    return [("v", f"v_add_u32 v{V_BT}, s{S_BIASOFF+j}, v{V_BIAS}"),
            ("r", (f"ds_read_b128 v[{b}:{b+3}], v{V_BT} offset:{bias_off}", ("b", j)))]


class Sched:
    def __init__(self, em):
        self.em = em
        self.hi = []
        self.q = []
        self.forced = 0

    def emit(self, op):
        em = self.em
        k, s = op
        if k == "v":
            em.i(s)
        elif k == "l":
            em.lds(s, "xw")
        elif k == "r":
            em.lds(s[0], s[1])
        elif k == "w":
            assert not any(e[0] == "r" and e[1][1] in s for e in self.hi)
            assert not any(e[1][0] == "r" and e[1][1][1] in s for e in self.q)
            return em.wait(lgtag=s)
        else:
            raise ValueError(k)
        return 1

    def gap(self, cap):
        while cap > 0:
            if self.hi:
                cap -= self.emit(self.hi.pop(0))
            elif self.q and self.q[0][0] <= self.em.n:
                cap -= self.emit(self.q.pop(0)[1])
            else:
                break

    def _force_q(self):
        rdy, op = self.q.pop(0)[:2]
        d = rdy - self.em.n
        while d > 0:
            k = min(d, 8)
            self.em.i(f"s_nop {k-1}")
            self.em.n += k - 1
            d -= k
        self.emit(op)

    def ensure_tags(self, tags):
        def pending(lst, get):
            return [i for i, e in enumerate(lst) if get(e)[0] == "r" and get(e)[1][1] in tags]
        p = pending(self.hi, lambda e: e)
        if p:
            self.forced += p[-1] + 1
            for _ in range(p[-1] + 1):
                self.emit(self.hi.pop(0))
        p = pending(self.q, lambda e: e[1])
        if p:
            self.forced += p[-1] + 1
            for _ in range(p[-1] + 1):
                self._force_q()

    def ensure_post(self, slot):
        p = [i for i, e in enumerate(self.q) if len(e) > 2 and e[2] <= slot]
        if p:
            self.forced += p[-1] + 1
            for _ in range(p[-1] + 1):
                self._force_q()

    def flush(self):
        while self.hi:
            self.emit(self.hi.pop(0))
        while self.q:
            self._force_q()


def gen_layer(em, seq0, lpar, bias_off):
    rbuf = lpar
    wbuf = 1 - lpar
    sc = Sched(em)

    def xread(s, mt):
        return ("r", (f"ds_read_b128 {xfrag(s, mt)}, v{V_XRD[mt>>1]} offset:{(mt&1)*RT2 + rbuf*RT + s*64}", ("x", s, mt)))

    par0 = seq0 & 1
    first = bias_ops(0, par0, bias_off) + [xread(s, mt) for s in range(KS) for mt in (0, 1)]
    PRE = 2 + 12
    for op in first[:PRE]:
        sc.emit(op)
    sc.hi = (first[PRE:] + pre_ops(0, par0, rbuf) + bias_ops(1, 1 - par0, bias_off)
             + [xread(s, mt) for s in range(KS) for mt in (2, 3)])
    for j in range(NT):
        seq = seq0 + j
        par = seq & 1
        jn = (j + 2) % NT
        passes = [list(range(nmt_of(j)))] if j < 6 else [[0, 1], [2, 3]]
        if j >= 1:
            sc.q += [(0, op) for op in pre_ops(j, par, rbuf)]
            if j + 1 < NT:
                sc.q += [(0, op) for op in bias_ops(j + 1, 1 - par, bias_off)]
        sc.ensure_post(j - 2)
        for pi, mts in enumerate(passes):
            lastpass = pi == len(passes) - 1
            used = 0
            if lastpass:
                if j + 2 == NT:
                    em.i(f"s_add_u32 s34, s34, {LAYERB}")
                em.i(f"s_add_u32 s33, s34, s{S_TILEOFF+jn}")
                em.i(f"v_add_u32 v{V_WA}, s33, v{V_L16}")
            for s in range(KS):
                lg = []
                if j <= 1:
                    lg = [("x", s, m) for m in mts]
                if s == 0:
                    lg.append(("b", j))
                vt = None
                if pi == 0 and s % 2 == 0:
                    vt = ("W", seq, min(s + 1, KS - 1))
                sc.ensure_tags(lg)
                em.wait(vmtag=vt, lgtag=lg)
                for mt in mts:
                    a = ACC[par] + 4 * mt
                    b = BIASR[par]
                    c = f"v[{b}:{b+3}]" if s == 0 else f"v[{a}:{a+3}]"
                    em.i(f"v_mfma_f32_16x16x32_bf16 v[{a}:{a+3}], {wslot(par, s)}, {xfrag(s, mt)}, {c}")
                    cap = CAP
                    if mt == mts[-1]:
                        if lastpass:
                            em.vmem(f"buffer_load_dwordx4 {wslot(par, s)}, v{V_WA}, s[24:27], s{S_SOFFK+s} offen{WSC}", ("W", seq + 2, s))
                            cap -= 1
                        if (pi == 0 and s % 2 == 1) or j <= 1:
                            cap -= 1
                    sc.gap(cap)
            rdy = em.n + 9
            sc.q += [(rdy, op, j) for op in post_ops(j, par, wbuf, mts)]
        if TSTAMP:
            em.wait(lg_all=True)
            for l in stamp_lines():
                em.raw(l)
    if os.environ.get('VERBOSE'):
        print("forced", sc.forced, "left at end", len(sc.q), file=sys.stderr)
    sc.flush()
    em.wait(lg_all=True)
    if STAMP:
        for l in stamp_lines():
            em.raw(l)
    em.i("s_barrier")


def gen_main_body():
    em = Em()
    em.vm = [("W", q, s) for q in range(2) for s in range(KS)]
    em.raw("L_loop:")
    gen_layer(em, 0, 0, 0)
    gen_layer(em, NT, 1, 1664)
    assert em.vm == [("W", 2 * NT + q, s) for q in range(2) for s in range(KS)], em.vm
    assert not em.lg
    em.i(f"v_add_u32 v{V_BIAS}, {2*1664}, v{V_BIAS}")
    em.i("s_sub_u32 s35, s35, 1")
    em.i("s_cmp_lg_u32 s35, 0")
    em.i("s_cbranch_scc1 L_loop")
    em.i("s_mov_b32 exec_hi, 0x000fffff")
    for r in range(16):
        off = f" offset:{r*XSTR}" if r else ""
        em.i(f"ds_read_b128 a[{4*r}:{4*r+3}], v{V_STG}{off}")
    for r in range(16):
        if r % 4 == 0:
            em.i(f"s_waitcnt lgkmcnt({12 - r})")
        so = "0" if r < 4 else f"s{50 + (r >> 2)}"
        imm = (r & 3) * ROWB
        off = f" offset:{imm}" if imm else ""
        em.i(f"buffer_store_dwordx4 a[{4*r}:{4*r+3}], v{V_GRW}, s[20:23], {so} offen{off}")
    if STAMP:
        em.i("s_mov_b32 exec_hi, -1")
        em.i("s_waitcnt vmcnt(0)")
        for l in stamp_lines():
            em.raw(l)
        for l in stamp_lines():
            em.raw(l.replace('s_memtime', 's_memrealtime'))
    return em.lines


def decode_frag(A, fs, src, dst, t0, t1):
    m, sh = magic(26 * 13, 2048)
    A(f"  s_mul_i32 s{t0}, s{fs}, {m}")
    A(f"  s_lshr_b32 s{t0}, s{t0}, {sh}")
    A(f"  s_mul_i32 s{src}, s{t0}, 346112")
    A(f"  s_mul_i32 s{t0}, s{t0}, {26*13}")
    A(f"  s_sub_u32 s{t0}, s{fs}, s{t0}")
    m, sh = magic(13, 26 * 13)
    A(f"  s_mul_i32 s{t1}, s{t0}, {m}")
    A(f"  s_lshr_b32 s{t1}, s{t1}, {sh}")
    A(f"  s_lshl_b32 s{dst}, s{t1}, 5")
    A(f"  s_add_u32 s{src}, s{src}, s{dst}")
    A(f"  s_mul_i32 s{t1}, s{t1}, 13")
    A(f"  s_sub_u32 s{t0}, s{t0}, s{t1}")
    A(f"  s_mul_i32 s{t0}, s{t0}, {32*ROWB}")
    A(f"  s_add_u32 s{src}, s{src}, s{t0}")
    A(f"  s_lshl_b32 s{dst}, s{fs}, 10")


def gather_loads(A, src, vbase):
    for jj in range(8):
        va = "v21" if jj < 4 else "v22"
        imm = (jj & 3) * ROWB
        off = f" offset:{imm}" if imm else ""
        A(f"  buffer_load_ushort v{vbase + jj}, {va}, s[44:47], s{src} offen{off}")


def pack_store(A, dst, vbase, vout):
    for q in range(4):
        A(f"  v_lshl_or_b32 v{vout+q}, v{vbase+2*q+1}, 16, v{vbase+2*q}")
    A(f"  buffer_store_dwordx4 v[{vout}:{vout+3}], v{V_L16}, s[24:27], s{dst} offen sc1")


def gen_prologue():
    L = []
    A = L.append
    A("  s_cmp_ge_u32 s2, 256")
    A("  s_cbranch_scc1 L_main_end")
    A("  s_load_dwordx8 s[4:11], s[0:1], 0")
    A("  s_load_dwordx4 s[12:15], s[0:1], 32")
    A("  v_lshrrev_b32 v26, 6, v0")
    A("  v_and_b32 v27, 63, v0")
    A("  v_and_b32 v28, 15, v0")
    A("  v_readfirstlane_b32 s3, v26")
    A("  v_lshrrev_b32 v29, 4, v27")
    A(f"  v_lshlrev_b32 v{V_L16}, 4, v27")
    A("  s_mul_i32 s49, s3, 13312")
    A(f"  v_add_u32 v{V_GRW}, s49, v{V_L16}")
    A("  v_lshlrev_b32 v23, 2, v0")
    A("  v_add_u32 v25, 4096, v23")
    A(f"  v_mul_u32_u24 v21, {8*ROWB}, v29")
    A("  v_lshl_add_u32 v21, v28, 1, v21")
    A(f"  v_add_u32 v22, {4*ROWB}, v21")
    A("  s_mov_b32 s51, 3328")
    A("  s_mov_b32 s52, 6656")
    A("  s_mov_b32 s53, 9984")
    A("  s_mul_i32 s33, s2, 53248")
    if NO_ROT:
        A("  s_mov_b32 s36, 0")
        A("  s_mov_b32 s37, 0")
    else:
        A("  s_lshr_b32 s38, s2, 3")
        A("  s_and_b32 s38, s38, 31")
        A("  s_mul_i32 s39, s38, 20")
        A("  s_lshr_b32 s39, s39, 8")
        A("  s_mul_i32 s39, s39, 13")
        A("  s_sub_u32 s36, s38, s39")
        A("  s_mul_i32 s39, s38, 43")
        A("  s_lshr_b32 s39, s39, 8")
        A("  s_mul_i32 s39, s39, 6")
        A("  s_sub_u32 s37, s38, s39")
        assert all((i * 20) >> 8 == i // 13 and (i * 43) >> 8 == i // 6 for i in range(32))
    A("  s_waitcnt lgkmcnt(0)")
    A("  s_add_u32 s16, s4, s33")
    A("  s_addc_u32 s17, s5, 0")
    A("  s_mov_b32 s18, 53248")
    A("  s_mov_b32 s19, 0x00020000")
    A("  s_mov_b32 s44, s6")
    A("  s_mov_b32 s45, s7")
    A(f"  s_mov_b32 s46, {6*346112}")
    A("  s_mov_b32 s47, 0x00020000")
    A("  s_mov_b32 s24, s14")
    A("  s_mov_b32 s25, s15")
    A(f"  s_mov_b32 s26, {WF_BYTES}")
    A("  s_mov_b32 s27, 0x00020000")
    A("  s_mov_b32 s28, s8")
    A("  s_mov_b32 s29, s9")
    A("  s_mov_b32 s30, 4992")
    A("  s_mov_b32 s31, 0x00020000")
    A("  s_add_u32 s20, s10, s33")
    A("  s_addc_u32 s21, s11, 0")
    A("  s_mov_b32 s22, 53248")
    A("  s_mov_b32 s23, 0x00020000")
    A("  s_mov_b32 s50, 0xffff0000")
    if STAMP:
        A("  s_lshl_b32 s38, s2, 2")
        A("  s_add_u32 s38, s38, s3")
        A("  s_lshl_b32 s38, s38, 10")
        A("  s_add_u32 s38, s38, 0x400000")
        A("  s_add_u32 s56, s14, s38")
        A("  s_addc_u32 s57, s15, 0")
        A("  s_mov_b32 s58, 1024")
        A("  s_mov_b32 s59, 0x00020000")
        A("  s_mov_b32 s62, 0")
        A("  v_mov_b32 v255, 0")
        L.extend([l.replace('s_memtime', 's_memrealtime') for l in stamp_lines()])
        L.extend(stamp_lines())
    A("  v_lshrrev_b32 v17, 2, v27")
    A("  v_add_u32 v17, 13, v17")
    A("  v_subrev_u32 v17, s36, v17")
    A("  v_subrev_u32 v19, 13, v17")
    A("  v_cmp_le_u32 vcc, 13, v17")
    A("  s_nop 1")
    A("  v_cndmask_b32 v17, v17, v19, vcc")
    A("  v_and_b32 v19, 3, v27")
    A("  v_lshlrev_b32 v19, 4, v19")
    A("  v_lshl_add_u32 v17, v17, 6, v19")
    A("  s_cmp_ge_u32 s3, 2")
    A("  s_cbranch_scc1 L_role_x0")
    A("  s_lshl_b32 s38, s2, 3")
    A("  s_lshl_b32 s39, s3, 2")
    A("  s_add_u32 s38, s38, s39")
    for q in range(4):
        if q:
            A("  s_add_u32 s38, s38, 1")
        decode_frag(A, 38, 64 + 2 * q, 65 + 2 * q, 40, 41)
        gather_loads(A, 64 + 2 * q, 184 + 8 * q)
    for q in range(4):
        A(f"  s_waitcnt vmcnt({8*(3-q) + q})")
        pack_store(A, 65 + 2 * q, 184 + 8 * q, 216 + 4 * q)
    A("  s_waitcnt vmcnt(0)")
    A("  v_mov_b32 v30, 0")
    A("  v_mov_b32 v31, 1")
    A("  s_mov_b64 exec, 1")
    A("  global_atomic_add v30, v31, s[12:13]")
    A("  s_mov_b64 exec, -1")
    A("  s_branch L_role_done")
    A("L_role_x0:")
    A("  s_sub_u32 s38, s3, 2")
    A("  s_mul_i32 s39, s38, 26624")
    A(f"  v_add_u32 v30, s39, v{V_L16}")
    A("  v_add_u32 v31, 13312, v30")
    A(f"  s_mul_i32 s39, s38, {2*RT2}")
    A("  v_add_u32 v18, s39, v17")
    A("  s_mov_b32 exec_hi, 0x000fffff")
    for r in range(32):
        so = "0" if (r & 15) < 4 else f"s{50 + ((r & 15) >> 2)}"
        imm = (r & 3) * ROWB
        off = f" offset:{imm}" if imm else ""
        va = "v30" if r < 16 else "v31"
        A(f"  buffer_load_dwordx4 a[{4*r}:{4*r+3}], {va}, s[16:19], {so} offen{off}")
    for r in range(32):
        if r % 4 == 0:
            A(f"  s_waitcnt vmcnt({28 - r})")
        o = (r >> 4) * RT2 + (r & 15) * XSTR
        off = f" offset:{o}" if o else ""
        A(f"  ds_write_b128 v18, a[{4*r}:{4*r+3}]{off}")
    A("  s_mov_b32 exec_hi, -1")
    A("L_role_done:")
    for r in range(5):
        off = f" offset:{r*1024}" if 0 < r < 4 else ""
        va = "v23" if r < 4 else "v25"
        A(f"  buffer_load_dword v{32+r}, {va}, s[28:31], 0 offen{off}")
    A("  s_mov_b32 s35, 3")
    A("  s_mov_b32 s34, 0")
    for p in range(KS):
        A(f"  s_add_u32 s38, s36, {p}")
        A("  s_sub_u32 s39, s38, 13")
        A("  s_cmp_ge_u32 s38, 13")
        A("  s_cselect_b32 s38, s39, s38")
        A(f"  s_lshl_b32 s{S_SOFFK+p}, s38, 10")
    A("  s_mul_i32 s40, s3, 6")
    for j in range(NT):
        if j >= 1:
            A(f"  s_add_u32 s38, s37, {j-1}")
            A("  s_sub_u32 s39, s38, 6")
            A("  s_cmp_ge_u32 s38, 6")
            A("  s_cselect_b32 s38, s39, s38")
            A("  s_add_u32 s38, s38, s40")
        else:
            A("  s_lshr_b32 s38, s3, 1")
            A("  s_add_u32 s38, s38, 24")
        A(f"  s_mul_i32 s{S_TILEOFF+j}, s38, {TILEB}")
        A(f"  s_lshl_b32 s{S_BIASOFF+j}, s38, 6")
        A("  s_lshr_b32 s39, s38, 1")
        A("  s_add_u32 s39, s39, 13")
        A("  s_sub_u32 s39, s39, s36")
        A("  s_sub_u32 s41, s39, 13")
        A("  s_cmp_ge_u32 s39, 13")
        A("  s_cselect_b32 s39, s41, s39")
        A("  s_lshl_b32 s39, s39, 6")
        A("  s_and_b32 s38, s38, 1")
        A("  s_lshl_b32 s38, s38, 5")
        A(f"  s_add_u32 s{S_COLW+j}, s39, s38")
    A(f"  v_mul_u32_u24 v16, {XSTR}, v28")
    A("  v_lshl_add_u32 v30, v29, 4, v16")
    A("  v_lshl_add_u32 v18, v29, 3, v16")
    A("  s_and_b32 s38, s3, 1")
    A(f"  s_mul_i32 s42, s38, {2*RT2}")
    A(f"  s_sub_u32 s43, {2*RT2}, s42")
    A(f"  v_add_u32 v{V_XRD[0]}, s42, v30")
    A(f"  v_add_u32 v{V_XRD[1]}, s43, v30")
    A(f"  v_add_u32 v{V_XD[0]}, s42, v18")
    A(f"  v_add_u32 v{V_XD[1]}, s43, v18")
    A("  v_lshlrev_b32 v20, 4, v29")
    A(f"  v_add_u32 v{V_BIAS}, {BIAS_LDS}, v20")
    A(f"  s_mul_i32 s49, s3, {RT2}")
    A(f"  v_add_u32 v{V_STG}, s49, v17")
    A("  v_lshlrev_b32 v24, 3, v0")
    A(f"  v_add_u32 v24, {BIAS_LDS}, v24")
    A("  s_waitcnt vmcnt(0)")
    for r in range(5):
        A(f"  v_lshlrev_b32 v{40+2*r}, 16, v{32+r}")
        A(f"  v_and_b32 v{41+2*r}, s50, v{32+r}")
        off = f" offset:{r*2048}" if r else ""
        A(f"  ds_write_b64 v24, v[{40+2*r}:{41+2*r}]{off}")
    A("  s_waitcnt lgkmcnt(0)")
    if STAMP:
        L.extend(stamp_lines())
    A("  s_barrier")
    for j in range(NT):
        A(f"  v_add_u32 v{V_DA[0][0]}, s{S_COLW+j}, v{V_XD[0]}")
        if nmt_of(j) == 4:
            A(f"  v_add_u32 v{V_DA[0][1]}, s{S_COLW+j}, v{V_XD[1]}")
        for mt in range(nmt_of(j)):
            x = X0F + 4 * unit(j, mt)
            off = f" offset:{RT2}" if (mt & 1) else ""
            A(f"  ds_read_b64 v[{x+2}:{x+3}], v{V_DA[0][mt>>1]}{off}")
    A("  s_waitcnt lgkmcnt(0)")
    for u in range(26):
        x = X0F + 4 * u
        A(f"  v_lshlrev_b32 v{x}, 16, v{x+2}")
        A(f"  v_and_b32 v{x+1}, s50, v{x+2}")
        A(f"  v_lshlrev_b32 v{x+2}, 16, v{x+3}")
        A(f"  v_and_b32 v{x+3}, s50, v{x+3}")
    if STAMP:
        L.extend(stamp_lines())
    A("  s_cmp_lg_u32 s3, 0")
    A("  s_cbranch_scc1 L_poll_done")
    A("  v_mov_b32 v30, 0")
    A(f"  s_mov_b32 s38, {POLL_MAX}")
    A("L_poll:")
    A("  global_load_dword v31, v30, s[12:13] sc1")
    A("  s_waitcnt vmcnt(0)")
    A("  v_readfirstlane_b32 s39, v31")
    A("  s_cmp_ge_u32 s39, 512")
    A("  s_cbranch_scc1 L_poll_done")
    A("  s_sleep 2")
    A("  s_sub_u32 s38, s38, 1")
    A("  s_cmp_lg_u32 s38, 0")
    A("  s_cbranch_scc1 L_poll")
    A("  s_mov_b32 s38, 0")
    A("L_fallback:")
    decode_frag(A, 38, 42, 43, 40, 41)
    gather_loads(A, 42, 184)
    A("  s_waitcnt vmcnt(0)")
    pack_store(A, 43, 184, 216)
    A("  s_add_u32 s38, s38, 1")
    A(f"  s_cmp_lt_u32 s38, {NFRAG}")
    A("  s_cbranch_scc1 L_fallback")
    A("  s_waitcnt vmcnt(0)")
    A("L_poll_done:")
    A("  s_barrier")
    A(f"  v_add_u32 v{V_WA}, s{S_TILEOFF}, v{V_L16}")
    A(f"  v_add_u32 v31, s{S_TILEOFF+1}, v{V_L16}")
    for q in range(2):
        for k in range(KS):
            va = f"v{V_WA}" if q == 0 else "v31"
            A(f"  buffer_load_dwordx4 {wslot(q, k)}, {va}, s[24:27], s{S_SOFFK+k} offen{WSC}")
    if STAMP:
        L.extend(stamp_lines())
    return L


def magic(d, maxn):
    for sh in range(8, 31):
        m = -(-(1 << sh) // d)
        if all((n * m) >> sh == n // d for n in range(maxn)) and maxn * m < (1 << 32):
            return m, sh
    raise ValueError


HEADER = open('standalone__cross_network_dcn__recsys.s.ref').read().split('; Override')[0]


def main(out):
    o = []
    o.append(HEADER.rstrip('\n'))
    o.append(f"; @launch grid=(256,1,1) block=(256,1,1) lds={LDS_TOTAL}")
    o.append('.amdgcn_target "amdgcn-amd-amdhsa--gfx950"')
    o.append(".text")
    o.append(".globl standalone__cross_network_dcn__recsys_kernel")
    o.append(".p2align 8")
    o.append(".type standalone__cross_network_dcn__recsys_kernel,@function")
    o.append("standalone__cross_network_dcn__recsys_kernel:")
    o += gen_prologue()
    o += gen_main_body()
    o.append("L_main_end:")
    o.append("  s_endpgm")
    o.append('.section .rodata,"a"')
    o.append(".p2align 6")
    o.append(""".amdhsa_kernel standalone__cross_network_dcn__recsys_kernel
  .amdhsa_next_free_vgpr 512
  .amdhsa_next_free_sgpr 102
  .amdhsa_accum_offset 256
  .amdhsa_group_segment_fixed_size 0
  .amdhsa_kernarg_size 48
  .amdhsa_user_sgpr_count 2
  .amdhsa_user_sgpr_kernarg_segment_ptr 1
  .amdhsa_system_sgpr_workgroup_id_x 1
.end_amdhsa_kernel""")
    open(out, 'w').write("\n".join(o) + "\n")


if __name__ == "__main__":
    main(sys.argv[1] if len(sys.argv) > 1 else 'standalone__cross_network_dcn__recsys.s')
```

```python
import sys, os

NO_MFMA = os.environ.get('NO_MFMA')
NO_LOAD = os.environ.get('NO_LOAD')
STAMP = os.environ.get('STAMP')
TSTAMP = os.environ.get('TSTAMP')
NO_PREFETCH = os.environ.get('NO_PREFETCH')
NO_ROT = os.environ.get('NO_ROT')
PRIME0 = int(os.environ.get('PRIME0', '6'))
CAP = int(os.environ.get('CAP', '2'))
EARLYW = os.environ.get('EARLYW')
LOADCAP = int(os.environ.get('LOADCAP', '1'))

NL = 6
KS = 13
NT = 7
XSTR = 864
RT = 16 * XSTR
RT2 = 2 * RT
BIAS_LDS = 4 * RT2
LDS_TOTAL = BIAS_LDS + 10240
ROWB = 832
TILEB = KS * 1024
LAYERB = 26 * TILEB
WF_BYTES = NL * LAYERB
NFRAG = NL * 26 * KS
PREP_WG = NFRAG // 4
MASK_S = 's50'

V_L16 = 1
V_XRD = [2, 3]
V_XD = [4, 5]
V_BIAS = 6
V_WA = 7
V_DA = [[8, 9], [10, 11]]
V_STG = 12
V_GRW = 13
V_BT = 240
V_WB = 241
ACC0 = 244
ACC = [16, 32]
BIASR = [48, 52]
XR = [56, 64]
TMP = 72
X0F = 80
WV = 184
XFR_A = 0
WA = 208
S_SOFFK = 64
S_TILEOFF = 77
S_COLW = 84
S_BIASOFF = 91


def wslot(par, p):
    s = par * KS + p
    if s < 12:
        b = WA + 4 * s
        return f"a[{b}:{b+3}]"
    b = WV + 4 * (s - 12)
    assert b + 3 <= 239
    return f"v[{b}:{b+3}]"


def xfrag(s, mt):
    b = XFR_A + (s * 4 + mt) * 4
    return f"a[{b}:{b+3}]"


def unit(j, mt):
    return mt if j == 0 else 2 + 4 * (j - 1) + mt


def nmt_of(j):
    return 2 if j == 0 else 4


class Em:
    def __init__(self):
        self.lines = []
        self.vm = []
        self.lg = []
        self.n = 0

    def raw(self, s):
        self.lines.append(s)

    def i(self, s):
        self.n += 1
        if NO_MFMA and s.startswith('v_mfma'):
            return
        if NO_LOAD and s.startswith('buffer_load_dwordx4'):
            return
        self.lines.append("  " + s)

    def vmem(self, s, tag):
        self.i(s)
        self.vm.append(tag)
        assert len(self.vm) <= 63

    def lds(self, s, tag):
        if os.environ.get('NO_XREAD') and s.startswith('ds_read_b128 a['):
            self.n += 1
            return
        self.i(s)
        self.lg.append(tag)

    def wait(self, vmtag=None, lgtag=None, lg_all=False):
        parts = []
        if vmtag is not None and vmtag in self.vm:
            idx = len(self.vm) - 1 - self.vm[::-1].index(vmtag)
            n = len(self.vm) - 1 - idx
            parts.append(f"vmcnt({n})")
            self.vm = self.vm[idx + 1:]
        if lg_all:
            if self.lg:
                parts.append("lgkmcnt(0)")
                self.lg = []
        elif lgtag is not None:
            tags = lgtag if isinstance(lgtag, list) else [lgtag]
            idx = -1
            for t in tags:
                if t in self.lg:
                    idx = max(idx, len(self.lg) - 1 - self.lg[::-1].index(t))
            if idx >= 0:
                n = len(self.lg) - 1 - idx
                n = min(n, 15)
                parts.append(f"lgkmcnt({n})")
                self.lg = self.lg[len(self.lg) - n:] if n else []
        if parts:
            self.i("s_waitcnt " + " ".join(parts))
            return 1
        return 0


def stamp_lines():
    return ["  s_memtime s[60:61]", "  s_waitcnt lgkmcnt(0)", "  v_mov_b32 v14, s60", "  v_mov_b32 v15, s61",
            "  buffer_store_dwordx2 v[14:15], v255, s[56:59], s62 offen", "  s_add_u32 s62, s62, 8"]


def pre_ops(j, par, rbuf):
    ops = [("v", f"v_add_u32 v{V_DA[par][0]}, s{S_COLW+j}, v{V_XD[0]}")]
    if nmt_of(j) == 4:
        ops.append(("v", f"v_add_u32 v{V_DA[par][1]}, s{S_COLW+j}, v{V_XD[1]}"))
    for mt in range(nmt_of(j)):
        xr = XR[par] + 2 * mt
        ops.append(("r", (f"ds_read_b64 v[{xr}:{xr+1}], v{V_DA[par][mt>>1]} offset:{(mt&1)*RT2 + rbuf*RT}", ("xr", j, mt))))
    return ops


def acc_of(j, par):
    return ACC0 if j == 0 else ACC[par]


def post_ops(j, par, wbuf, mts):
    ops = [("w", [("xr", j, mt) for mt in range(nmt_of(j))])]
    for mt in mts:
        x0 = X0F + 4 * unit(j, mt)
        xr = XR[par] + 2 * mt
        a = acc_of(j, par) + 4 * mt
        t = TMP + 4 * (mt & 1)
        ops.append(("v", f"v_lshlrev_b32 v{t+0}, 16, v{xr}"))
        ops.append(("v", f"v_and_b32 v{t+1}, {MASK_S}, v{xr}"))
        ops.append(("v", f"v_lshlrev_b32 v{t+2}, 16, v{xr+1}"))
        ops.append(("v", f"v_and_b32 v{t+3}, {MASK_S}, v{xr+1}"))
        for r in range(4):
            ops.append(("v", f"v_fma_f32 v{a+r}, v{x0+r}, v{a+r}, v{t+r}"))
        ops.append(("v", f"v_cvt_pk_bf16_f32 v{xr}, v{a}, v{a+1}"))
        ops.append(("v", f"v_cvt_pk_bf16_f32 v{xr+1}, v{a+2}, v{a+3}"))
        ops.append(("l", f"ds_write_b64 v{V_DA[par][mt>>1]}, v[{xr}:{xr+1}] offset:{(mt&1)*RT2 + wbuf*RT}"))
    return ops


def bias_ops(j, par, bias_off):
    b = BIASR[par]
    return [("v", f"v_add_u32 v{V_BT}, s{S_BIASOFF+j}, v{V_BIAS}"),
            ("r", (f"ds_read_b128 v[{b}:{b+3}], v{V_BT} offset:{bias_off}", ("b", j)))]


class Sched:
    def __init__(self, em):
        self.em = em
        self.hi = []
        self.q = []
        self.forced = 0

    def emit(self, op):
        em = self.em
        k, s = op
        if k == "v":
            em.i(s)
        elif k == "l":
            em.lds(s, "xw")
        elif k == "r":
            em.lds(s[0], s[1])
        elif k == "w":
            assert not any(e[0] == "r" and e[1][1] in s for e in self.hi)
            assert not any(e[1][0] == "r" and e[1][1][1] in s for e in self.q)
            return em.wait(lgtag=s)
        else:
            raise ValueError(k)
        return 1

    def gap(self, cap):
        while cap > 0:
            if self.hi:
                cap -= self.emit(self.hi.pop(0))
            elif self.q and self.q[0][0] <= self.em.n:
                cap -= self.emit(self.q.pop(0)[1])
            else:
                break

    def _force_q(self):
        rdy, op = self.q.pop(0)[:2]
        d = rdy - self.em.n
        while d > 0:
            k = min(d, 8)
            self.em.i(f"s_nop {k-1}")
            self.em.n += k - 1
            d -= k
        self.emit(op)

    def ensure_tags(self, tags):
        def pending(lst, get):
            return [i for i, e in enumerate(lst) if get(e)[0] == "r" and get(e)[1][1] in tags]
        p = pending(self.hi, lambda e: e)
        if p:
            self.forced += p[-1] + 1
            for _ in range(p[-1] + 1):
                self.emit(self.hi.pop(0))
        p = pending(self.q, lambda e: e[1])
        if p:
            self.forced += p[-1] + 1
            for _ in range(p[-1] + 1):
                self._force_q()

    def ensure_post(self, slot):
        p = [i for i, e in enumerate(self.q) if len(e) > 2 and e[2] <= slot]
        if p:
            self.forced += p[-1] + 1
            for _ in range(p[-1] + 1):
                self._force_q()

    def flush(self):
        while self.hi:
            self.emit(self.hi.pop(0))
        while self.q:
            self._force_q()


LASTP = os.environ.get('LASTP', '3')


def gen_layer(em, seq0, lpar, bias_off):
    rbuf = lpar
    wbuf = 1 - lpar
    sc = Sched(em)

    def xread(s, mt):
        return ("r", (f"ds_read_b128 {xfrag(s, mt)}, v{V_XRD[mt>>1]} offset:{(mt&1)*RT2 + rbuf*RT + s*64}", ("x", s, mt)))

    def wload(par, s, va, seq):
        em.vmem(f"buffer_load_dwordx4 {wslot(par, s)}, v{va}, s[24:27], s{S_SOFFK+s} offen", ("W", seq, s))

    def mfma(j, par, s, mt):
        a = acc_of(j, par) + 4 * mt
        b = BIASR[par]
        c = f"v[{b}:{b+3}]" if s == 0 else f"v[{a}:{a+3}]"
        em.i(f"v_mfma_f32_16x16x32_bf16 v[{a}:{a+3}], {wslot(par, s)}, {xfrag(s, mt)}, {c}")

    par0 = seq0 & 1
    par1 = 1 - par0
    first = (bias_ops(1, par1, bias_off) + [xread(0, mt) for mt in range(4)] + bias_ops(0, par0, bias_off)
             + [xread(s, mt) for s in range(1, KS) for mt in range(4)])
    PRE = 4 + 10
    for op in first[:PRE]:
        sc.emit(op)
    sc.hi = first[PRE:]
    sc.q = [(0, op) for op in pre_ops(0, par0, rbuf) + pre_ops(1, par1, rbuf)]
    em.i(f"s_add_u32 s33, s34, s{S_TILEOFF+2}")
    em.i(f"v_add_u32 v{V_WA}, s33, v{V_L16}")
    em.i(f"s_add_u32 s33, s34, s{S_TILEOFF+3}")
    em.i(f"v_add_u32 v{V_WB}, s33, v{V_L16}")
    for s in range(KS):
        lg = [("x", s, m) for m in range(4)]
        if s == 0:
            lg += [("b", 0), ("b", 1)]
        vt = ("W", seq0 + 1, min(s + 1, KS - 1)) if s % 2 == 0 else None
        sc.ensure_tags(lg)
        em.wait(vmtag=vt, lgtag=lg)
        order = [(1, 0), (1, 1), (0, 0), (1, 2), (0, 1), (1, 3)]
        for (j, mt) in order:
            mfma(j, par0 if j == 0 else par1, s, mt)
            cap = CAP
            if (j, mt) == (0, 1):
                wload(par0, s, V_WA, seq0 + 2)
                cap -= 1
            if (j, mt) == (1, 3):
                wload(par1, s, V_WB, seq0 + 3)
                cap -= 2
            sc.gap(cap)
        if s == 1:
            sc.q += [(0, op) for op in bias_ops(2, par0, bias_off)]
    rdy = em.n + 9
    sc.q += [(rdy, op, 0) for op in post_ops(0, par0, wbuf, [0, 1])]
    sc.q += [(rdy, op, 1) for op in post_ops(1, par1, wbuf, [0, 1, 2, 3])]
    if TSTAMP:
        em.wait(lg_all=True)
        for l in stamp_lines():
            em.raw(l)
    for j in range(2, NT):
        seq = seq0 + j
        par = seq & 1
        jn = (j + 2) % NT
        if j < 6 or LASTP == '1':
            passes = [[0, 1, 2, 3]]
        elif LASTP == '3':
            passes = [[0, 1, 2], [3]]
        else:
            passes = [[0, 1], [2, 3]]
        sc.q += [(0, op) for op in pre_ops(j, par, rbuf)]
        if j + 1 < NT:
            sc.q += [(0, op) for op in bias_ops(j + 1, 1 - par, bias_off)]
        if j >= 3:
            sc.ensure_post(j - 2)
        for pi, mts in enumerate(passes):
            lastpass = pi == len(passes) - 1
            if lastpass:
                if j + 2 == NT:
                    em.i(f"s_add_u32 s34, s34, {LAYERB}")
                em.i(f"s_add_u32 s33, s34, s{S_TILEOFF+jn}")
                em.i(f"v_add_u32 v{V_WA}, s33, v{V_L16}")
            for s in range(KS):
                lg = [("b", j)] if s == 0 else []
                vt = None
                if pi == 0 and s % 2 == 0:
                    vt = ("W", seq, min(s + 1, KS - 1))
                sc.ensure_tags(lg)
                em.wait(vmtag=vt, lgtag=lg)
                for mt in mts:
                    mfma(j, par, s, mt)
                    cap = CAP
                    if mt == mts[-1]:
                        if lastpass:
                            wload(par, s, V_WA, seq + 2)
                            cap -= 1
                        if pi == 0 and s % 2 == 1:
                            cap -= 1
                    sc.gap(cap)
            rdy = em.n + 9
            sc.q += [(rdy, op, j) for op in post_ops(j, par, wbuf, mts)]
        if TSTAMP:
            em.wait(lg_all=True)
            for l in stamp_lines():
                em.raw(l)
    if os.environ.get('VERBOSE'):
        print("forced", sc.forced, "left at end", len(sc.q), file=sys.stderr)
    sc.flush()
    em.wait(lg_all=True)
    if STAMP:
        for l in stamp_lines():
            em.raw(l)
    if not os.environ.get('NO_BAR'):
        em.i("s_barrier")
    if os.environ.get('BSTAMP'):
        for l in stamp_lines():
            em.raw(l)


def gen_main_body():
    em = Em()
    em.vm = [("W", q, s) for q in range(2) for s in range(KS)]
    em.raw("L_loop:")
    gen_layer(em, 0, 0, 0)
    gen_layer(em, NT, 1, 1664)
    assert em.vm == [("W", 2 * NT + q, s) for q in range(2) for s in range(KS)], em.vm
    assert not em.lg
    em.i(f"v_add_u32 v{V_BIAS}, {2*1664}, v{V_BIAS}")
    em.i("s_sub_u32 s35, s35, 1")
    em.i("s_cmp_lg_u32 s35, 0")
    em.i("s_cbranch_scc1 L_loop")
    em.i("s_mov_b32 exec_hi, 0x000fffff")
    for r in range(16):
        off = f" offset:{r*XSTR}" if r else ""
        em.i(f"ds_read_b128 a[{4*r}:{4*r+3}], v{V_STG}{off}")
    for r in range(16):
        if r % 4 == 0:
            em.i(f"s_waitcnt lgkmcnt({12 - r})")
        so = "0" if r < 4 else f"s{50 + (r >> 2)}"
        imm = (r & 3) * ROWB
        off = f" offset:{imm}" if imm else ""
        em.i(f"buffer_store_dwordx4 a[{4*r}:{4*r+3}], v{V_GRW}, s[20:23], {so} offen{off}")
    if STAMP:
        em.i("s_mov_b32 exec_hi, -1")
        em.i("s_waitcnt vmcnt(0)")
        for l in stamp_lines():
            em.raw(l)
        for l in stamp_lines():
            em.raw(l.replace('s_memtime', 's_memrealtime'))
    return em.lines


def gen_prologue():
    L = []
    A = L.append
    A("  s_cmp_ge_u32 s2, 256")
    A("  s_cbranch_scc1 L_main_end")
    A("  s_load_dwordx8 s[4:11], s[0:1], 0")
    A("  s_load_dwordx2 s[14:15], s[0:1], 40")
    A("  v_lshrrev_b32 v26, 6, v0")
    A("  v_and_b32 v27, 63, v0")
    A("  v_and_b32 v28, 15, v0")
    A("  v_readfirstlane_b32 s3, v26")
    A("  v_lshrrev_b32 v29, 4, v27")
    A(f"  v_lshlrev_b32 v{V_L16}, 4, v27")
    A("  s_mul_i32 s49, s3, 13312")
    A(f"  v_add_u32 v{V_GRW}, s49, v{V_L16}")
    A("  v_lshlrev_b32 v23, 2, v0")
    A("  v_add_u32 v25, 4096, v23")
    A("  s_mov_b32 s51, 3328")
    A("  s_mov_b32 s52, 6656")
    A("  s_mov_b32 s53, 9984")
    A("  s_mul_i32 s33, s2, 53248")
    A("  s_waitcnt lgkmcnt(0)")
    A("  s_add_u32 s16, s4, s33")
    A("  s_addc_u32 s17, s5, 0")
    A("  s_mov_b32 s18, 53248")
    A("  s_mov_b32 s19, 0x00020000")
    A("  s_mov_b32 s28, s8")
    A("  s_mov_b32 s29, s9")
    A("  s_mov_b32 s30, 4992")
    A("  s_mov_b32 s31, 0x00020000")
    if STAMP:
        A("  s_lshl_b32 s36, s2, 2")
        A("  s_add_u32 s36, s36, s3")
        A("  s_lshl_b32 s36, s36, 10")
        A("  s_add_u32 s36, s36, 0x400000")
        A("  s_add_u32 s56, s14, s36")
        A("  s_addc_u32 s57, s15, 0")
        A("  s_mov_b32 s58, 1024")
        A("  s_mov_b32 s59, 0x00020000")
        A("  s_mov_b32 s62, 0")
        A("  v_mov_b32 v255, 0")
        L.extend([l.replace('s_memtime', 's_memrealtime') for l in stamp_lines()])
        L.extend(stamp_lines())
    A("  s_mov_b32 exec_hi, 0x000fffff")
    for r in range(16):
        so = "0" if r < 4 else f"s{50 + (r >> 2)}"
        imm = (r & 3) * ROWB
        off = f" offset:{imm}" if imm else ""
        A(f"  buffer_load_dwordx4 a[{4*r}:{4*r+3}], v{V_GRW}, s[16:19], {so} offen{off}")
    A("  s_mov_b32 exec_hi, -1")
    for r in range(5):
        off = f" offset:{r*1024}" if 0 < r < 4 else ""
        va = "v23" if r < 4 else "v25"
        A(f"  buffer_load_dword v{32+r}, {va}, s[28:31], 0 offen{off}")
    A("  s_add_u32 s20, s10, s33")
    A("  s_addc_u32 s21, s11, 0")
    A("  s_mov_b32 s22, 53248")
    A("  s_mov_b32 s23, 0x00020000")
    A("  s_mov_b32 s24, s14")
    A("  s_mov_b32 s25, s15")
    A(f"  s_mov_b32 s26, {WF_BYTES}")
    A("  s_mov_b32 s27, 0x00020000")
    A("  s_mov_b32 s50, 0xffff0000")
    A("  s_mov_b32 s35, 3")
    A("  s_mov_b32 s34, 0")
    if NO_ROT:
        A("  s_mov_b32 s36, 0")
        A("  s_mov_b32 s37, 0")
    else:
        A("  s_lshr_b32 s38, s2, 3")
        A("  s_and_b32 s38, s38, 31")
        A("  s_mul_i32 s39, s38, 20")
        A("  s_lshr_b32 s39, s39, 8")
        A("  s_mul_i32 s39, s39, 13")
        A("  s_sub_u32 s36, s38, s39")
        A("  s_mul_i32 s39, s38, 43")
        A("  s_lshr_b32 s39, s39, 8")
        A("  s_mul_i32 s39, s39, 6")
        A("  s_sub_u32 s37, s38, s39")
        assert all((i * 20) >> 8 == i // 13 and (i * 43) >> 8 == i // 6 for i in range(32))
    for p in range(KS):
        A(f"  s_add_u32 s38, s36, {p}")
        A("  s_sub_u32 s39, s38, 13")
        A("  s_cmp_ge_u32 s38, 13")
        A("  s_cselect_b32 s38, s39, s38")
        A(f"  s_lshl_b32 s{S_SOFFK+p}, s38, 10")
    A("  s_mul_i32 s40, s3, 6")
    for j in range(NT):
        if j >= 1:
            A(f"  s_add_u32 s38, s37, {j-1}")
            A("  s_sub_u32 s39, s38, 6")
            A("  s_cmp_ge_u32 s38, 6")
            A("  s_cselect_b32 s38, s39, s38")
            A("  s_add_u32 s38, s38, s40")
        else:
            A("  s_lshr_b32 s38, s3, 1")
            A("  s_add_u32 s38, s38, 24")
        A(f"  s_mul_i32 s{S_TILEOFF+j}, s38, {TILEB}")
        A(f"  s_lshl_b32 s{S_BIASOFF+j}, s38, 6")
        A("  s_lshr_b32 s39, s38, 1")
        A("  s_add_u32 s39, s39, 13")
        A("  s_sub_u32 s39, s39, s36")
        A("  s_sub_u32 s41, s39, 13")
        A("  s_cmp_ge_u32 s39, 13")
        A("  s_cselect_b32 s39, s41, s39")
        A("  s_lshl_b32 s39, s39, 6")
        A("  s_and_b32 s38, s38, 1")
        A("  s_lshl_b32 s38, s38, 5")
        A(f"  s_add_u32 s{S_COLW+j}, s39, s38")
        if j == 1:
            A(f"  v_add_u32 v{V_WA}, s{S_TILEOFF}, v{V_L16}")
            A(f"  v_add_u32 v31, s{S_TILEOFF+1}, v{V_L16}")
            prime = [(q, s) for q in range(2) for s in range(KS)]

            def prime_load(q, s):
                va = f"v{V_WA}" if q == 0 else "v31"
                return f"  buffer_load_dwordx4 {wslot(q, s)}, {va}, s[24:27], s{S_SOFFK+s} offen"
            for (q, s) in prime[:PRIME0]:
                A(prime_load(q, s))
            rest = prime[PRIME0:]
    A(f"  v_mul_u32_u24 v16, {XSTR}, v28")
    A("  v_lshl_add_u32 v30, v29, 4, v16")
    A("  v_lshl_add_u32 v18, v29, 3, v16")
    A("  s_and_b32 s38, s3, 1")
    A(f"  s_mul_i32 s45, s38, {2*RT2}")
    A(f"  s_sub_u32 s54, {2*RT2}, s45")
    A(f"  v_add_u32 v{V_XRD[0]}, s45, v30")
    A(f"  v_add_u32 v{V_XRD[1]}, s54, v30")
    A(f"  v_add_u32 v{V_XD[0]}, s45, v18")
    A(f"  v_add_u32 v{V_XD[1]}, s54, v18")
    A("  v_lshlrev_b32 v20, 4, v29")
    A(f"  v_add_u32 v{V_BIAS}, {BIAS_LDS}, v20")
    A("  v_lshrrev_b32 v17, 2, v27")
    A("  v_add_u32 v17, 13, v17")
    A("  v_subrev_u32 v17, s36, v17")
    A("  v_subrev_u32 v19, 13, v17")
    A("  v_cmp_le_u32 vcc, 13, v17")
    A("  s_nop 1")
    A("  v_cndmask_b32 v17, v17, v19, vcc")
    A("  v_and_b32 v19, 3, v27")
    A("  v_lshlrev_b32 v19, 4, v19")
    A("  v_lshl_add_u32 v17, v17, 6, v19")
    A(f"  s_mul_i32 s49, s3, {RT2}")
    A(f"  v_add_u32 v{V_STG}, s49, v17")
    A("  v_lshlrev_b32 v24, 3, v0")
    A(f"  v_add_u32 v24, {BIAS_LDS}, v24")
    if STAMP:
        L.extend(stamp_lines())
        A(f"  s_waitcnt vmcnt({PRIME0+5+1})")
        L.extend(stamp_lines())
        A(f"  s_waitcnt vmcnt({PRIME0+2})")
    else:
        A(f"  s_waitcnt vmcnt({PRIME0})")
    A("  s_mov_b32 exec_hi, 0x000fffff")
    for r in range(16):
        off = f" offset:{r*XSTR}" if r else ""
        A(f"  ds_write_b128 v{V_STG}, a[{4*r}:{4*r+3}]{off}")
    A("  s_mov_b32 exec_hi, -1")
    for r in range(5):
        A(f"  v_lshlrev_b32 v{40+2*r}, 16, v{32+r}")
        A(f"  v_and_b32 v{41+2*r}, s50, v{32+r}")
        off = f" offset:{r*2048}" if r else ""
        A(f"  ds_write_b64 v24, v[{40+2*r}:{41+2*r}]{off}")
    A("  s_waitcnt lgkmcnt(0)")
    if STAMP:
        L.extend(stamp_lines())
    A("  s_barrier")
    for j in range(NT):
        A(f"  v_add_u32 v{V_DA[0][0]}, s{S_COLW+j}, v{V_XD[0]}")
        if nmt_of(j) == 4:
            A(f"  v_add_u32 v{V_DA[0][1]}, s{S_COLW+j}, v{V_XD[1]}")
        for mt in range(nmt_of(j)):
            x = X0F + 4 * unit(j, mt)
            off = f" offset:{RT2}" if (mt & 1) else ""
            A(f"  ds_read_b64 v[{x+2}:{x+3}], v{V_DA[0][mt>>1]}{off}")
        for _ in range(3):
            if rest:
                A(prime_load(*rest.pop(0)))
    assert not rest
    A("  s_waitcnt lgkmcnt(0)")
    for u in range(26):
        x = X0F + 4 * u
        A(f"  v_lshlrev_b32 v{x}, 16, v{x+2}")
        A(f"  v_and_b32 v{x+1}, s50, v{x+2}")
        A(f"  v_lshlrev_b32 v{x+2}, 16, v{x+3}")
        A(f"  v_and_b32 v{x+3}, s50, v{x+3}")
    if STAMP:
        L.extend(stamp_lines())
    return L


def magic(d, maxn):
    for sh in range(8, 31):
        m = -(-(1 << sh) // d)
        if all((n * m) >> sh == n // d for n in range(maxn)) and maxn * m < (1 << 32):
            return m, sh
    raise ValueError


def gen_prep():
    L = []
    A = L.append
    A(f"  s_cmp_ge_u32 s2, {PREP_WG}")
    A("  s_cbranch_scc1 L_prep_end")
    A("  s_load_dwordx4 s[4:7], s[0:1], 0")
    A("  s_load_dwordx2 s[8:9], s[0:1], 40")
    A("  v_lshrrev_b32 v1, 6, v0")
    A("  v_and_b32 v2, 63, v0")
    A("  v_and_b32 v3, 15, v0")
    A("  v_readfirstlane_b32 s3, v1")
    A("  v_lshrrev_b32 v4, 4, v2")
    A("  s_lshl_b32 s10, s2, 2")
    A("  s_add_u32 s10, s10, s3")
    m, sh = magic(26 * 13, NFRAG)
    A(f"  s_mul_i32 s11, s10, {m}")
    A(f"  s_lshr_b32 s11, s11, {sh}")
    A(f"  s_mul_i32 s12, s11, {26*13}")
    A("  s_sub_u32 s12, s10, s12")
    m, sh = magic(13, 26 * 13)
    A(f"  s_mul_i32 s13, s12, {m}")
    A(f"  s_lshr_b32 s13, s13, {sh}")
    A("  s_mul_i32 s14, s13, 13")
    A("  s_sub_u32 s14, s12, s14")
    A("  s_mul_i32 s17, s11, 346112")
    A(f"  s_mul_i32 s18, s14, {32*ROWB}")
    A("  s_add_u32 s17, s17, s18")
    A("  s_lshl_b32 s18, s13, 5")
    A("  s_add_u32 s17, s17, s18")
    A(f"  v_mul_u32_u24 v5, {8*ROWB}, v4")
    A("  v_lshl_add_u32 v5, v3, 1, v5")
    A(f"  v_add_u32 v6, {4*ROWB}, v5")
    A("  v_lshlrev_b32 v7, 4, v2")
    A("  s_lshl_b32 s19, s10, 10")
    A("  s_waitcnt lgkmcnt(0)")
    A("  s_mov_b32 s20, s6")
    A("  s_mov_b32 s21, s7")
    A(f"  s_mov_b32 s22, {6*346112}")
    A("  s_mov_b32 s23, 0x00020000")
    A("  s_mov_b32 s24, s8")
    A("  s_mov_b32 s25, s9")
    A(f"  s_mov_b32 s26, {WF_BYTES}")
    A("  s_mov_b32 s27, 0x00020000")
    for jj in range(8):
        va = "v5" if jj < 4 else "v6"
        imm = (jj & 3) * ROWB
        off = f" offset:{imm}" if imm else ""
        A(f"  buffer_load_ushort v{16 + jj}, {va}, s[20:23], s17 offen{off}")
    npf = 0
    if not NO_PREFETCH:
        A("  s_mov_b32 s28, s4")
        A("  s_mov_b32 s29, s5")
        A(f"  s_mov_b32 s30, {16384*ROWB}")
        A("  s_mov_b32 s31, 0x00020000")
        A("  s_mul_i32 s15, s10, 7168")
        A("  s_add_u32 s16, s15, 4096")
        npf = 7
        for q in range(npf):
            so = "s15" if q < 4 else "s16"
            imm = (q & 3) * 1024
            off = f" offset:{imm}" if imm else ""
            A(f"  buffer_load_dwordx4 v[{24+4*q}:{27+4*q}], v7, s[28:31], {so} offen{off}")
    A(f"  s_waitcnt vmcnt({npf})")
    for q in range(4):
        A(f"  v_lshl_or_b32 v{8+q}, v{17+2*q}, 16, v{16+2*q}")
    A("  buffer_store_dwordx4 v[8:11], v7, s[24:27], s19 offen")
    A("L_prep_end:")
    A("  s_endpgm")
    return L


HEADER = open('standalone__cross_network_dcn__recsys.s.ref').read().split('; Override')[0]


def main(out):
    o = []
    o.append(HEADER.rstrip('\n'))
    o.append(f"; @launch kernel=dcn_prep_kernel grid=({PREP_WG},1,1) block=(256,1,1) lds=0")
    o.append(f"; @launch kernel=standalone__cross_network_dcn__recsys_kernel grid=(256,1,1) block=(256,1,1) lds={LDS_TOTAL}")
    o.append('.amdgcn_target "amdgcn-amd-amdhsa--gfx950"')
    o.append(".text")
    o.append(".globl dcn_prep_kernel")
    o.append(".p2align 8")
    o.append(".type dcn_prep_kernel,@function")
    o.append("dcn_prep_kernel:")
    o += gen_prep()
    o.append(".globl standalone__cross_network_dcn__recsys_kernel")
    o.append(".p2align 8")
    o.append(".type standalone__cross_network_dcn__recsys_kernel,@function")
    o.append("standalone__cross_network_dcn__recsys_kernel:")
    o += gen_prologue()
    o += gen_main_body()
    o.append("L_main_end:")
    o.append("  s_endpgm")
    o.append('.section .rodata,"a"')
    o.append(".p2align 6")
    o.append(""".amdhsa_kernel dcn_prep_kernel
  .amdhsa_next_free_vgpr 56
  .amdhsa_next_free_sgpr 32
  .amdhsa_accum_offset 56
  .amdhsa_group_segment_fixed_size 0
  .amdhsa_kernarg_size 48
  .amdhsa_user_sgpr_count 2
  .amdhsa_user_sgpr_kernarg_segment_ptr 1
  .amdhsa_system_sgpr_workgroup_id_x 1
.end_amdhsa_kernel
.p2align 6
.amdhsa_kernel standalone__cross_network_dcn__recsys_kernel
  .amdhsa_next_free_vgpr 512
  .amdhsa_next_free_sgpr 102
  .amdhsa_accum_offset 256
  .amdhsa_group_segment_fixed_size 0
  .amdhsa_kernarg_size 48
  .amdhsa_user_sgpr_count 2
  .amdhsa_user_sgpr_kernarg_segment_ptr 1
  .amdhsa_system_sgpr_workgroup_id_x 1
.end_amdhsa_kernel""")
    open(out, 'w').write("\n".join(o) + "\n")


if __name__ == "__main__":
    main(sys.argv[1] if len(sys.argv) > 1 else 'standalone__cross_network_dcn__recsys.s')
```

```python
import sys, os

NO_MFMA = os.environ.get('NO_MFMA')
NO_LOAD = os.environ.get('NO_LOAD')
STAMP = os.environ.get('STAMP')
TSTAMP = os.environ.get('TSTAMP')
NO_PREFETCH = not os.environ.get('PREFETCH')
NO_ROT = os.environ.get('NO_ROT')
PRIME0 = int(os.environ.get('PRIME0', '6'))
CAP = int(os.environ.get('CAP', '2'))
EARLYW = os.environ.get('EARLYW')
LOADCAP = int(os.environ.get('LOADCAP', '1'))

NL = 6
KS = 13
NT = 7
XSTR = 864
RT = 16 * XSTR
RT2 = 2 * RT
BIAS_LDS = 4 * RT2
LDS_TOTAL = BIAS_LDS + 10240
ROWB = 832
TILEB = KS * 1024
LAYERB = 26 * TILEB
WF_BYTES = NL * LAYERB
NFRAG = NL * 26 * KS
PREP_WG = NFRAG // 4
MASK_S = 's50'

V_L16 = 1
V_XRD = [2, 3]
V_XD = [4, 5]
V_BIAS = 6
V_WA = 7
V_DA = [[8, 9], [10, 11]]
V_STG = 12
V_GRW = 13
V_BT = 240
V_WB = 241
ACC0 = 244
ACC = [16, 32]
BIASR = [48, 52]
XR = [56, 64]
TMP = 72
X0F = 80
WV = 184
XFR_A = 0
WA = 208
S_SOFFK = 64
S_TILEOFF = 77
S_COLW = 84
S_BIASOFF = 91


def wslot(par, p):
    s = par * KS + p
    if s < 12:
        b = WA + 4 * s
        return f"a[{b}:{b+3}]"
    b = WV + 4 * (s - 12)
    assert b + 3 <= 239
    return f"v[{b}:{b+3}]"


def xfrag(s, mt):
    b = XFR_A + (s * 4 + mt) * 4
    return f"a[{b}:{b+3}]"


def unit(j, mt):
    return mt if j == 0 else 2 + 4 * (j - 1) + mt


def nmt_of(j):
    return 2 if j == 0 else 4


class Em:
    def __init__(self):
        self.lines = []
        self.vm = []
        self.lg = []
        self.n = 0

    def raw(self, s):
        self.lines.append(s)

    def i(self, s):
        self.n += 1
        if NO_MFMA and s.startswith('v_mfma'):
            return
        if NO_LOAD and s.startswith('buffer_load_dwordx4'):
            return
        self.lines.append("  " + s)

    def vmem(self, s, tag):
        self.i(s)
        self.vm.append(tag)
        assert len(self.vm) <= 63

    def lds(self, s, tag):
        if os.environ.get('NO_XREAD') and s.startswith('ds_read_b128 a['):
            self.n += 1
            return
        self.i(s)
        self.lg.append(tag)

    def wait(self, vmtag=None, lgtag=None, lg_all=False):
        parts = []
        if vmtag is not None and vmtag in self.vm:
            idx = len(self.vm) - 1 - self.vm[::-1].index(vmtag)
            n = len(self.vm) - 1 - idx
            parts.append(f"vmcnt({n})")
            self.vm = self.vm[idx + 1:]
        if lg_all:
            if self.lg:
                parts.append("lgkmcnt(0)")
                self.lg = []
        elif lgtag is not None:
            tags = lgtag if isinstance(lgtag, list) else [lgtag]
            idx = -1
            for t in tags:
                if t in self.lg:
                    idx = max(idx, len(self.lg) - 1 - self.lg[::-1].index(t))
            if idx >= 0:
                n = len(self.lg) - 1 - idx
                n = min(n, 15)
                parts.append(f"lgkmcnt({n})")
                self.lg = self.lg[len(self.lg) - n:] if n else []
        if parts:
            self.i("s_waitcnt " + " ".join(parts))
            return 1
        return 0


def stamp_lines():
    return ["  s_memtime s[60:61]", "  s_waitcnt lgkmcnt(0)", "  v_mov_b32 v14, s60", "  v_mov_b32 v15, s61",
            "  buffer_store_dwordx2 v[14:15], v255, s[56:59], s62 offen", "  s_add_u32 s62, s62, 8"]


def pre_ops(j, par, rbuf):
    ops = [("v", f"v_add_u32 v{V_DA[par][0]}, s{S_COLW+j}, v{V_XD[0]}")]
    if nmt_of(j) == 4:
        ops.append(("v", f"v_add_u32 v{V_DA[par][1]}, s{S_COLW+j}, v{V_XD[1]}"))
    for mt in range(nmt_of(j)):
        xr = XR[par] + 2 * mt
        ops.append(("r", (f"ds_read_b64 v[{xr}:{xr+1}], v{V_DA[par][mt>>1]} offset:{(mt&1)*RT2 + rbuf*RT}", ("xr", j, mt))))
    return ops


def acc_of(j, par):
    return ACC0 if j == 0 else ACC[par]


def post_ops(j, par, wbuf, mts):
    ops = [("w", [("xr", j, mt) for mt in range(nmt_of(j))])]
    for mt in mts:
        x0 = X0F + 4 * unit(j, mt)
        xr = XR[par] + 2 * mt
        a = acc_of(j, par) + 4 * mt
        t = TMP + 4 * (mt & 1)
        ops.append(("v", f"v_lshlrev_b32 v{t+0}, 16, v{xr}"))
        ops.append(("v", f"v_and_b32 v{t+1}, {MASK_S}, v{xr}"))
        ops.append(("v", f"v_lshlrev_b32 v{t+2}, 16, v{xr+1}"))
        ops.append(("v", f"v_and_b32 v{t+3}, {MASK_S}, v{xr+1}"))
        for r in range(4):
            ops.append(("v", f"v_fma_f32 v{a+r}, v{x0+r}, v{a+r}, v{t+r}"))
        ops.append(("v", f"v_cvt_pk_bf16_f32 v{xr}, v{a}, v{a+1}"))
        ops.append(("v", f"v_cvt_pk_bf16_f32 v{xr+1}, v{a+2}, v{a+3}"))
        ops.append(("l", f"ds_write_b64 v{V_DA[par][mt>>1]}, v[{xr}:{xr+1}] offset:{(mt&1)*RT2 + wbuf*RT}"))
    return ops


def bias_ops(j, par, bias_off):
    b = BIASR[par]
    return [("v", f"v_add_u32 v{V_BT}, s{S_BIASOFF+j}, v{V_BIAS}"),
            ("r", (f"ds_read_b128 v[{b}:{b+3}], v{V_BT} offset:{bias_off}", ("b", j)))]


class Sched:
    def __init__(self, em):
        self.em = em
        self.hi = []
        self.q = []
        self.forced = 0

    def emit(self, op):
        em = self.em
        k, s = op
        if k == "v":
            em.i(s)
        elif k == "l":
            em.lds(s, "xw")
        elif k == "r":
            em.lds(s[0], s[1])
        elif k == "w":
            assert not any(e[0] == "r" and e[1][1] in s for e in self.hi)
            assert not any(e[1][0] == "r" and e[1][1][1] in s for e in self.q)
            return em.wait(lgtag=s)
        else:
            raise ValueError(k)
        return 1

    def gap(self, cap):
        while cap > 0:
            if self.hi:
                cap -= self.emit(self.hi.pop(0))
            elif self.q and self.q[0][0] <= self.em.n:
                cap -= self.emit(self.q.pop(0)[1])
            else:
                break

    def _force_q(self):
        rdy, op = self.q.pop(0)[:2]
        d = rdy - self.em.n
        while d > 0:
            k = min(d, 8)
            self.em.i(f"s_nop {k-1}")
            self.em.n += k - 1
            d -= k
        self.emit(op)

    def ensure_tags(self, tags):
        def pending(lst, get):
            return [i for i, e in enumerate(lst) if get(e)[0] == "r" and get(e)[1][1] in tags]
        p = pending(self.hi, lambda e: e)
        if p:
            self.forced += p[-1] + 1
            for _ in range(p[-1] + 1):
                self.emit(self.hi.pop(0))
        p = pending(self.q, lambda e: e[1])
        if p:
            self.forced += p[-1] + 1
            for _ in range(p[-1] + 1):
                self._force_q()

    def ensure_post(self, slot):
        p = [i for i, e in enumerate(self.q) if len(e) > 2 and e[2] <= slot]
        if p:
            self.forced += p[-1] + 1
            for _ in range(p[-1] + 1):
                self._force_q()

    def flush(self):
        while self.hi:
            self.emit(self.hi.pop(0))
        while self.q:
            self._force_q()


LASTP = os.environ.get('LASTP', '1')


def gen_layer(em, seq0, lpar, bias_off):
    rbuf = lpar
    wbuf = 1 - lpar
    sc = Sched(em)

    def xread(s, mt):
        return ("r", (f"ds_read_b128 {xfrag(s, mt)}, v{V_XRD[mt>>1]} offset:{(mt&1)*RT2 + rbuf*RT + s*64}", ("x", s, mt)))

    def wload(par, s, va, seq):
        em.vmem(f"buffer_load_dwordx4 {wslot(par, s)}, v{va}, s[24:27], s{S_SOFFK+s} offen{os.environ.get('WPOL','')}", ("W", seq, s))

    def mfma(j, par, s, mt):
        a = acc_of(j, par) + 4 * mt
        b = BIASR[par]
        c = f"v[{b}:{b+3}]" if s == 0 else f"v[{a}:{a+3}]"
        em.i(f"v_mfma_f32_16x16x32_bf16 v[{a}:{a+3}], {wslot(par, s)}, {xfrag(s, mt)}, {c}")

    par0 = seq0 & 1
    par1 = 1 - par0
    first = (bias_ops(1, par1, bias_off) + [xread(0, mt) for mt in range(4)] + bias_ops(0, par0, bias_off)
             + [xread(s, mt) for s in range(1, KS) for mt in range(4)])
    PRE = 4 + 10
    for op in first[:PRE]:
        sc.emit(op)
    sc.hi = first[PRE:]
    sc.q = [(0, op) for op in pre_ops(0, par0, rbuf) + pre_ops(1, par1, rbuf)]
    em.i(f"s_add_u32 s33, s34, s{S_TILEOFF+2}")
    em.i(f"v_add_u32 v{V_WA}, s33, v{V_L16}")
    em.i(f"s_add_u32 s33, s34, s{S_TILEOFF+3}")
    em.i(f"v_add_u32 v{V_WB}, s33, v{V_L16}")
    for s in range(KS):
        lg = [("x", s, m) for m in range(4)]
        if s == 0:
            lg += [("b", 0), ("b", 1)]
        vt = ("W", seq0 + 1, min(s + 1, KS - 1)) if s % 2 == 0 else None
        sc.ensure_tags(lg)
        em.wait(vmtag=vt, lgtag=lg)
        order = [(1, 0), (1, 1), (0, 0), (1, 2), (0, 1), (1, 3)]
        for (j, mt) in order:
            mfma(j, par0 if j == 0 else par1, s, mt)
            cap = CAP
            if (j, mt) == (0, 1):
                wload(par0, s, V_WA, seq0 + 2)
                cap -= 1
            if (j, mt) == (1, 3):
                wload(par1, s, V_WB, seq0 + 3)
                cap -= 2
            sc.gap(cap)
        if s == 1:
            sc.q += [(0, op) for op in bias_ops(2, par0, bias_off)]
    rdy = em.n + 9
    sc.q += [(rdy, op, 0) for op in post_ops(0, par0, wbuf, [0, 1])]
    sc.q += [(rdy, op, 1) for op in post_ops(1, par1, wbuf, [0, 1, 2, 3])]
    if TSTAMP:
        em.wait(lg_all=True)
        for l in stamp_lines():
            em.raw(l)
    for j in range(2, NT):
        seq = seq0 + j
        par = seq & 1
        jn = (j + 2) % NT
        if j < 6 or LASTP == '1':
            passes = [[0, 1, 2, 3]]
        elif LASTP == '3':
            passes = [[0, 1, 2], [3]]
        else:
            passes = [[0, 1], [2, 3]]
        sc.q += [(0, op) for op in pre_ops(j, par, rbuf)]
        if j + 1 < NT:
            sc.q += [(0, op) for op in bias_ops(j + 1, 1 - par, bias_off)]
        if j >= 3:
            sc.ensure_post(j - 2)
        for pi, mts in enumerate(passes):
            lastpass = pi == len(passes) - 1
            if lastpass:
                if j + 2 == NT:
                    em.i(f"s_add_u32 s34, s34, {LAYERB}")
                em.i(f"s_add_u32 s33, s34, s{S_TILEOFF+jn}")
                em.i(f"v_add_u32 v{V_WA}, s33, v{V_L16}")
            for s in range(KS):
                lg = [("b", j)] if s == 0 else []
                vt = None
                if pi == 0 and s % 2 == 0:
                    vt = ("W", seq, min(s + 1, KS - 1))
                sc.ensure_tags(lg)
                em.wait(vmtag=vt, lgtag=lg)
                for mt in mts:
                    mfma(j, par, s, mt)
                    cap = CAP
                    if mt == mts[-1]:
                        if lastpass:
                            wload(par, s, V_WA, seq + 2)
                            cap -= 1
                        if pi == 0 and s % 2 == 1:
                            cap -= 1
                    sc.gap(cap)
            rdy = em.n + 9
            sc.q += [(rdy, op, j) for op in post_ops(j, par, wbuf, mts)]
        if TSTAMP:
            em.wait(lg_all=True)
            for l in stamp_lines():
                em.raw(l)
    if os.environ.get('VERBOSE'):
        print("forced", sc.forced, "left at end", len(sc.q), file=sys.stderr)
    sc.flush()
    em.wait(lg_all=True)
    if STAMP:
        for l in stamp_lines():
            em.raw(l)
    if not os.environ.get('NO_BAR'):
        em.i("s_barrier")
    if os.environ.get('BSTAMP'):
        for l in stamp_lines():
            em.raw(l)


def gen_main_body():
    em = Em()
    em.vm = [("W", q, s) for q in range(2) for s in range(KS)]
    em.raw("L_loop:")
    gen_layer(em, 0, 0, 0)
    gen_layer(em, NT, 1, 1664)
    assert em.vm == [("W", 2 * NT + q, s) for q in range(2) for s in range(KS)], em.vm
    assert not em.lg
    em.i(f"v_add_u32 v{V_BIAS}, {2*1664}, v{V_BIAS}")
    em.i("s_sub_u32 s35, s35, 1")
    em.i("s_cmp_lg_u32 s35, 0")
    em.i("s_cbranch_scc1 L_loop")
    em.i("s_mov_b32 exec_hi, 0x000fffff")
    for r in range(16):
        off = f" offset:{r*XSTR}" if r else ""
        em.i(f"ds_read_b128 a[{4*r}:{4*r+3}], v{V_STG}{off}")
    for r in range(16):
        if r % 4 == 0:
            em.i(f"s_waitcnt lgkmcnt({12 - r})")
        so = "0" if r < 4 else f"s{50 + (r >> 2)}"
        imm = (r & 3) * ROWB
        off = f" offset:{imm}" if imm else ""
        em.i(f"buffer_store_dwordx4 a[{4*r}:{4*r+3}], v{V_GRW}, s[20:23], {so} offen{off}")
    if STAMP:
        em.i("s_mov_b32 exec_hi, -1")
        em.i("s_waitcnt vmcnt(0)")
        for l in stamp_lines():
            em.raw(l)
        for l in stamp_lines():
            em.raw(l.replace('s_memtime', 's_memrealtime'))
    return em.lines


def gen_prologue():
    L = []
    A = L.append
    A("  s_cmp_ge_u32 s2, 256")
    A("  s_cbranch_scc1 L_main_end")
    A("  s_load_dwordx8 s[4:11], s[0:1], 0")
    A("  s_load_dwordx2 s[14:15], s[0:1], 40")
    A("  v_lshrrev_b32 v26, 6, v0")
    A("  v_and_b32 v27, 63, v0")
    A("  v_and_b32 v28, 15, v0")
    A("  v_readfirstlane_b32 s3, v26")
    A("  v_lshrrev_b32 v29, 4, v27")
    A(f"  v_lshlrev_b32 v{V_L16}, 4, v27")
    A("  s_mul_i32 s49, s3, 13312")
    A(f"  v_add_u32 v{V_GRW}, s49, v{V_L16}")
    A("  v_lshlrev_b32 v23, 2, v0")
    A("  v_add_u32 v25, 4096, v23")
    A("  s_mov_b32 s51, 3328")
    A("  s_mov_b32 s52, 6656")
    A("  s_mov_b32 s53, 9984")
    A("  s_mul_i32 s33, s2, 53248")
    A("  s_waitcnt lgkmcnt(0)")
    A("  s_add_u32 s16, s4, s33")
    A("  s_addc_u32 s17, s5, 0")
    A("  s_mov_b32 s18, 53248")
    A("  s_mov_b32 s19, 0x00020000")
    A("  s_mov_b32 s28, s8")
    A("  s_mov_b32 s29, s9")
    A("  s_mov_b32 s30, 4992")
    A("  s_mov_b32 s31, 0x00020000")
    if STAMP:
        A("  s_lshl_b32 s36, s2, 2")
        A("  s_add_u32 s36, s36, s3")
        A("  s_lshl_b32 s36, s36, 10")
        A("  s_add_u32 s36, s36, 0x400000")
        A("  s_add_u32 s56, s14, s36")
        A("  s_addc_u32 s57, s15, 0")
        A("  s_mov_b32 s58, 1024")
        A("  s_mov_b32 s59, 0x00020000")
        A("  s_mov_b32 s62, 0")
        A("  v_mov_b32 v255, 0")
        L.extend([l.replace('s_memtime', 's_memrealtime') for l in stamp_lines()])
        L.extend(stamp_lines())
    for r in range(5):
        off = f" offset:{r*1024}" if 0 < r < 4 else ""
        va = "v23" if r < 4 else "v25"
        A(f"  buffer_load_dword v{32+r}, {va}, s[28:31], 0 offen{off}")
    A("  s_mov_b32 exec_hi, 0x000fffff")
    for r in range(16):
        so = "0" if r < 4 else f"s{50 + (r >> 2)}"
        imm = (r & 3) * ROWB
        off = f" offset:{imm}" if imm else ""
        A(f"  buffer_load_dwordx4 a[{4*r}:{4*r+3}], v{V_GRW}, s[16:19], {so} offen{off}")
    A("  s_mov_b32 exec_hi, -1")
    A("  s_add_u32 s20, s10, s33")
    A("  s_addc_u32 s21, s11, 0")
    A("  s_mov_b32 s22, 53248")
    A("  s_mov_b32 s23, 0x00020000")
    A("  s_mov_b32 s24, s14")
    A("  s_mov_b32 s25, s15")
    A(f"  s_mov_b32 s26, {WF_BYTES}")
    A("  s_mov_b32 s27, 0x00020000")
    A("  s_mov_b32 s50, 0xffff0000")
    A("  s_mov_b32 s35, 3")
    A("  s_mov_b32 s34, 0")
    if NO_ROT:
        A("  s_mov_b32 s36, 0")
        A("  s_mov_b32 s37, 0")
    else:
        A("  s_lshr_b32 s38, s2, 3")
        A("  s_and_b32 s38, s38, 31")
        A("  s_mul_i32 s39, s38, 20")
        A("  s_lshr_b32 s39, s39, 8")
        A("  s_mul_i32 s39, s39, 13")
        A("  s_sub_u32 s36, s38, s39")
        A("  s_mul_i32 s39, s38, 43")
        A("  s_lshr_b32 s39, s39, 8")
        A("  s_mul_i32 s39, s39, 6")
        A("  s_sub_u32 s37, s38, s39")
        assert all((i * 20) >> 8 == i // 13 and (i * 43) >> 8 == i // 6 for i in range(32))
    for p in range(KS):
        A(f"  s_add_u32 s38, s36, {p}")
        A("  s_sub_u32 s39, s38, 13")
        A("  s_cmp_ge_u32 s38, 13")
        A("  s_cselect_b32 s38, s39, s38")
        A(f"  s_lshl_b32 s{S_SOFFK+p}, s38, 10")
    A("  s_mul_i32 s40, s3, 6")
    for j in range(NT):
        if j >= 1:
            A(f"  s_add_u32 s38, s37, {j-1}")
            A("  s_sub_u32 s39, s38, 6")
            A("  s_cmp_ge_u32 s38, 6")
            A("  s_cselect_b32 s38, s39, s38")
            A("  s_add_u32 s38, s38, s40")
        else:
            A("  s_lshr_b32 s38, s3, 1")
            A("  s_add_u32 s38, s38, 24")
        A(f"  s_mul_i32 s{S_TILEOFF+j}, s38, {TILEB}")
        A(f"  s_lshl_b32 s{S_BIASOFF+j}, s38, 6")
        A("  s_lshr_b32 s39, s38, 1")
        A("  s_add_u32 s39, s39, 13")
        A("  s_sub_u32 s39, s39, s36")
        A("  s_sub_u32 s41, s39, 13")
        A("  s_cmp_ge_u32 s39, 13")
        A("  s_cselect_b32 s39, s41, s39")
        A("  s_lshl_b32 s39, s39, 6")
        A("  s_and_b32 s38, s38, 1")
        A("  s_lshl_b32 s38, s38, 5")
        A(f"  s_add_u32 s{S_COLW+j}, s39, s38")
        if j == 1:
            A(f"  v_add_u32 v{V_WA}, s{S_TILEOFF}, v{V_L16}")
            A(f"  v_add_u32 v31, s{S_TILEOFF+1}, v{V_L16}")
            prime = [(q, s) for q in range(2) for s in range(KS)]

            def prime_load(q, s):
                va = f"v{V_WA}" if q == 0 else "v31"
                return f"  buffer_load_dwordx4 {wslot(q, s)}, {va}, s[24:27], s{S_SOFFK+s} offen"
            for (q, s) in prime[:PRIME0]:
                A(prime_load(q, s))
            rest = prime[PRIME0:]
    A(f"  v_mul_u32_u24 v16, {XSTR}, v28")
    A("  v_lshl_add_u32 v30, v29, 4, v16")
    A("  v_lshl_add_u32 v18, v29, 3, v16")
    A("  s_and_b32 s38, s3, 1")
    A(f"  s_mul_i32 s45, s38, {2*RT2}")
    A(f"  s_sub_u32 s54, {2*RT2}, s45")
    A(f"  v_add_u32 v{V_XRD[0]}, s45, v30")
    A(f"  v_add_u32 v{V_XRD[1]}, s54, v30")
    A(f"  v_add_u32 v{V_XD[0]}, s45, v18")
    A(f"  v_add_u32 v{V_XD[1]}, s54, v18")
    A("  v_lshlrev_b32 v20, 4, v29")
    A(f"  v_add_u32 v{V_BIAS}, {BIAS_LDS}, v20")
    A("  v_lshrrev_b32 v17, 2, v27")
    A("  v_add_u32 v17, 13, v17")
    A("  v_subrev_u32 v17, s36, v17")
    A("  v_subrev_u32 v19, 13, v17")
    A("  v_cmp_le_u32 vcc, 13, v17")
    A("  s_nop 1")
    A("  v_cndmask_b32 v17, v17, v19, vcc")
    A("  v_and_b32 v19, 3, v27")
    A("  v_lshlrev_b32 v19, 4, v19")
    A("  v_lshl_add_u32 v17, v17, 6, v19")
    A(f"  s_mul_i32 s49, s3, {RT2}")
    A(f"  v_add_u32 v{V_STG}, s49, v17")
    A("  v_lshlrev_b32 v24, 3, v0")
    A(f"  v_add_u32 v24, {BIAS_LDS}, v24")
    ex = 0
    if STAMP:
        L.extend(stamp_lines())
        ex = 1
    A(f"  s_waitcnt vmcnt({16+PRIME0+ex})")
    for r in range(5):
        A(f"  v_lshlrev_b32 v{40+2*r}, 16, v{32+r}")
        A(f"  v_and_b32 v{41+2*r}, s50, v{32+r}")
        off = f" offset:{r*2048}" if r else ""
        A(f"  ds_write_b64 v24, v[{40+2*r}:{41+2*r}]{off}")
    A("  s_mov_b32 exec_hi, 0x000fffff")
    for r in range(16):
        if r % 2 == 0:
            A(f"  s_waitcnt vmcnt({14-r+PRIME0+ex})")
        off = f" offset:{r*XSTR}" if r else ""
        A(f"  ds_write_b128 v{V_STG}, a[{4*r}:{4*r+3}]{off}")
    A("  s_mov_b32 exec_hi, -1")
    if STAMP:
        L.extend(stamp_lines())
    A("  s_waitcnt lgkmcnt(0)")
    if STAMP:
        L.extend(stamp_lines())
    A("  s_barrier")
    def unpack(u):
        x = X0F + 4 * u
        A(f"  v_lshlrev_b32 v{x}, 16, v{x+2}")
        A(f"  v_and_b32 v{x+1}, s50, v{x+2}")
        A(f"  v_lshlrev_b32 v{x+2}, 16, v{x+3}")
        A(f"  v_and_b32 v{x+3}, s50, v{x+3}")
    issued = 0
    done = 0
    for j in range(NT):
        A(f"  v_add_u32 v{V_DA[0][0]}, s{S_COLW+j}, v{V_XD[0]}")
        if nmt_of(j) == 4:
            A(f"  v_add_u32 v{V_DA[0][1]}, s{S_COLW+j}, v{V_XD[1]}")
        for mt in range(nmt_of(j)):
            x = X0F + 4 * unit(j, mt)
            assert unit(j, mt) == issued
            off = f" offset:{RT2}" if (mt & 1) else ""
            A(f"  ds_read_b64 v[{x+2}:{x+3}], v{V_DA[0][mt>>1]}{off}")
            issued += 1
        for _ in range(4):
            if rest:
                A(prime_load(*rest.pop(0)))
        if issued - done >= 12:
            A(f"  s_waitcnt lgkmcnt({issued - done - 4})")
            for u in range(done, done + 4):
                unpack(u)
            done += 4
    assert not rest
    while done < 26:
        n = min(4, 26 - done)
        A(f"  s_waitcnt lgkmcnt({26 - done - n})")
        for u in range(done, done + n):
            unpack(u)
        done += n
    if STAMP:
        L.extend(stamp_lines())
    return L


def magic(d, maxn):
    for sh in range(8, 31):
        m = -(-(1 << sh) // d)
        if all((n * m) >> sh == n // d for n in range(maxn)) and maxn * m < (1 << 32):
            return m, sh
    raise ValueError


def gen_prep():
    L = []
    A = L.append
    A(f"  s_cmp_ge_u32 s2, {PREP_WG}")
    A("  s_cbranch_scc1 L_prep_end")
    A("  s_load_dwordx4 s[4:7], s[0:1], 0")
    A("  s_load_dwordx2 s[8:9], s[0:1], 40")
    A("  v_lshrrev_b32 v1, 6, v0")
    A("  v_and_b32 v2, 63, v0")
    A("  v_and_b32 v3, 15, v0")
    A("  v_readfirstlane_b32 s3, v1")
    A("  v_lshrrev_b32 v4, 4, v2")
    A("  s_lshl_b32 s10, s2, 2")
    A("  s_add_u32 s10, s10, s3")
    m, sh = magic(26 * 13, NFRAG)
    A(f"  s_mul_i32 s11, s10, {m}")
    A(f"  s_lshr_b32 s11, s11, {sh}")
    A(f"  s_mul_i32 s12, s11, {26*13}")
    A("  s_sub_u32 s12, s10, s12")
    m, sh = magic(13, 26 * 13)
    A(f"  s_mul_i32 s13, s12, {m}")
    A(f"  s_lshr_b32 s13, s13, {sh}")
    A("  s_mul_i32 s14, s13, 13")
    A("  s_sub_u32 s14, s12, s14")
    A("  s_mul_i32 s17, s11, 346112")
    A(f"  s_mul_i32 s18, s14, {32*ROWB}")
    A("  s_add_u32 s17, s17, s18")
    A("  s_lshl_b32 s18, s13, 5")
    A("  s_add_u32 s17, s17, s18")
    A(f"  v_mul_u32_u24 v5, {8*ROWB}, v4")
    A("  v_lshl_add_u32 v5, v3, 1, v5")
    A(f"  v_add_u32 v6, {4*ROWB}, v5")
    A("  v_lshlrev_b32 v7, 4, v2")
    A("  s_lshl_b32 s19, s10, 10")
    A("  s_waitcnt lgkmcnt(0)")
    A("  s_mov_b32 s20, s6")
    A("  s_mov_b32 s21, s7")
    A(f"  s_mov_b32 s22, {6*346112}")
    A("  s_mov_b32 s23, 0x00020000")
    A("  s_mov_b32 s24, s8")
    A("  s_mov_b32 s25, s9")
    A(f"  s_mov_b32 s26, {WF_BYTES}")
    A("  s_mov_b32 s27, 0x00020000")
    for jj in range(8):
        va = "v5" if jj < 4 else "v6"
        imm = (jj & 3) * ROWB
        off = f" offset:{imm}" if imm else ""
        A(f"  buffer_load_ushort v{16 + jj}, {va}, s[20:23], s17 offen{off}")
    npf = 0
    if not NO_PREFETCH:
        A("  s_mov_b32 s28, s4")
        A("  s_mov_b32 s29, s5")
        A(f"  s_mov_b32 s30, {16384*ROWB}")
        A("  s_mov_b32 s31, 0x00020000")
        A("  s_mul_i32 s15, s10, 7168")
        A("  s_add_u32 s16, s15, 4096")
        npf = 7
        for q in range(npf):
            so = "s15" if q < 4 else "s16"
            imm = (q & 3) * 1024
            off = f" offset:{imm}" if imm else ""
            A(f"  buffer_load_dwordx4 v[{24+4*q}:{27+4*q}], v7, s[28:31], {so} offen{off}")
    A(f"  s_waitcnt vmcnt({npf})")
    for q in range(4):
        A(f"  v_lshl_or_b32 v{8+q}, v{17+2*q}, 16, v{16+2*q}")
    A("  buffer_store_dwordx4 v[8:11], v7, s[24:27], s19 offen")
    A("L_prep_end:")
    A("  s_endpgm")
    return L


HEADER = open('standalone__cross_network_dcn__recsys.s.ref').read().split('; Override')[0]


def main(out):
    o = []
    o.append(HEADER.rstrip('\n'))
    o.append(f"; @launch kernel=dcn_prep_kernel grid=({PREP_WG},1,1) block=(256,1,1) lds=0")
    o.append(f"; @launch kernel=standalone__cross_network_dcn__recsys_kernel grid=(256,1,1) block=(256,1,1) lds={LDS_TOTAL}")
    o.append('.amdgcn_target "amdgcn-amd-amdhsa--gfx950"')
    o.append(".text")
    o.append(".globl dcn_prep_kernel")
    o.append(".p2align 8")
    o.append(".type dcn_prep_kernel,@function")
    o.append("dcn_prep_kernel:")
    o += gen_prep()
    o.append(".globl standalone__cross_network_dcn__recsys_kernel")
    o.append(".p2align 8")
    o.append(".type standalone__cross_network_dcn__recsys_kernel,@function")
    o.append("standalone__cross_network_dcn__recsys_kernel:")
    o += gen_prologue()
    o += gen_main_body()
    o.append("L_main_end:")
    o.append("  s_endpgm")
    o.append('.section .rodata,"a"')
    o.append(".p2align 6")
    o.append(""".amdhsa_kernel dcn_prep_kernel
  .amdhsa_next_free_vgpr 56
  .amdhsa_next_free_sgpr 32
  .amdhsa_accum_offset 56
  .amdhsa_group_segment_fixed_size 0
  .amdhsa_kernarg_size 48
  .amdhsa_user_sgpr_count 2
  .amdhsa_user_sgpr_kernarg_segment_ptr 1
  .amdhsa_system_sgpr_workgroup_id_x 1
.end_amdhsa_kernel
.p2align 6
.amdhsa_kernel standalone__cross_network_dcn__recsys_kernel
  .amdhsa_next_free_vgpr 512
  .amdhsa_next_free_sgpr 102
  .amdhsa_accum_offset 256
  .amdhsa_group_segment_fixed_size 0
  .amdhsa_kernarg_size 48
  .amdhsa_user_sgpr_count 2
  .amdhsa_user_sgpr_kernarg_segment_ptr 1
  .amdhsa_system_sgpr_workgroup_id_x 1
.end_amdhsa_kernel""")
    open(out, 'w').write("\n".join(o) + "\n")


if __name__ == "__main__":
    main(sys.argv[1] if len(sys.argv) > 1 else 'standalone__cross_network_dcn__recsys.s')
```

```python
import sys, os

NO_MFMA = os.environ.get('NO_MFMA')
NO_LOAD = os.environ.get('NO_LOAD')
STAMP = os.environ.get('STAMP')
TSTAMP = os.environ.get('TSTAMP')
NO_PREFETCH = not os.environ.get('PREFETCH')
NO_ROT = os.environ.get('NO_ROT')
PRIME0 = int(os.environ.get('PRIME0', '6'))
CAP = int(os.environ.get('CAP', '2'))
EARLYW = os.environ.get('EARLYW')
LOADCAP = int(os.environ.get('LOADCAP', '1'))

NL = 6
KS = 13
NT = 7
XSTR = 864
RT = 16 * XSTR
RT2 = 2 * RT
BIAS_LDS = 4 * RT2
LDS_TOTAL = BIAS_LDS + 10240
ROWB = 832
TILEB = KS * 1024
LAYERB = 26 * TILEB
WF_BYTES = NL * LAYERB
NFRAG = NL * 26 * KS
PREP_BLOCK = int(os.environ.get('PREP_BLOCK', '256'))
PREP_WPB = PREP_BLOCK // 64
PREP_WG = (NFRAG + PREP_WPB - 1) // PREP_WPB
MASK_S = 's50'

V_L16 = 1
V_XRD = [2, 3]
V_XD = [4, 5]
V_BIAS = 6
V_WA = 7
V_DA = [[8, 9], [10, 11]]
V_STG = 12
V_GRW = 13
V_BT = 240
V_WB = 241
ACC0 = 244
ACC = [16, 32]
BIASR = [48, 52]
XR = [56, 64]
TMP = 72
X0F = 80
WV = 184
XFR_A = 0
WA = 208
S_SOFFK = 64
S_TILEOFF = 77
S_COLW = 84
S_BIASOFF = 91


def wslot(par, p):
    s = par * KS + p
    if s < 12:
        b = WA + 4 * s
        return f"a[{b}:{b+3}]"
    b = WV + 4 * (s - 12)
    assert b + 3 <= 239
    return f"v[{b}:{b+3}]"


def xfrag(s, mt):
    b = XFR_A + (s * 4 + mt) * 4
    return f"a[{b}:{b+3}]"


def unit(j, mt):
    return mt if j == 0 else 2 + 4 * (j - 1) + mt


def nmt_of(j):
    return 2 if j == 0 else 4


class Em:
    def __init__(self):
        self.lines = []
        self.vm = []
        self.lg = []
        self.n = 0

    def raw(self, s):
        self.lines.append(s)

    def i(self, s):
        self.n += 1
        if NO_MFMA and s.startswith('v_mfma'):
            return
        if NO_LOAD and s.startswith('buffer_load_dwordx4'):
            return
        self.lines.append("  " + s)

    def vmem(self, s, tag):
        self.i(s)
        self.vm.append(tag)
        assert len(self.vm) <= 63

    def lds(self, s, tag):
        if os.environ.get('NO_XREAD') and s.startswith('ds_read_b128 a['):
            self.n += 1
            return
        self.i(s)
        self.lg.append(tag)

    def wait(self, vmtag=None, lgtag=None, lg_all=False):
        parts = []
        if vmtag is not None and vmtag in self.vm:
            idx = len(self.vm) - 1 - self.vm[::-1].index(vmtag)
            n = len(self.vm) - 1 - idx
            parts.append(f"vmcnt({n})")
            self.vm = self.vm[idx + 1:]
        if lg_all:
            if self.lg:
                parts.append("lgkmcnt(0)")
                self.lg = []
        elif lgtag is not None:
            tags = lgtag if isinstance(lgtag, list) else [lgtag]
            idx = -1
            for t in tags:
                if t in self.lg:
                    idx = max(idx, len(self.lg) - 1 - self.lg[::-1].index(t))
            if idx >= 0:
                n = len(self.lg) - 1 - idx
                n = min(n, 15)
                parts.append(f"lgkmcnt({n})")
                self.lg = self.lg[len(self.lg) - n:] if n else []
        if parts:
            self.i("s_waitcnt " + " ".join(parts))
            return 1
        return 0


def stamp_lines():
    return ["  s_memtime s[60:61]", "  s_waitcnt lgkmcnt(0)", "  v_mov_b32 v14, s60", "  v_mov_b32 v15, s61",
            "  buffer_store_dwordx2 v[14:15], v255, s[56:59], s62 offen", "  s_add_u32 s62, s62, 8"]


def pre_ops(j, par, rbuf):
    ops = [("v", f"v_add_u32 v{V_DA[par][0]}, s{S_COLW+j}, v{V_XD[0]}")]
    if nmt_of(j) == 4:
        ops.append(("v", f"v_add_u32 v{V_DA[par][1]}, s{S_COLW+j}, v{V_XD[1]}"))
    for mt in range(nmt_of(j)):
        xr = XR[par] + 2 * mt
        ops.append(("r", (f"ds_read_b64 v[{xr}:{xr+1}], v{V_DA[par][mt>>1]} offset:{(mt&1)*RT2 + rbuf*RT}", ("xr", j, mt))))
    return ops


def acc_of(j, par):
    return ACC0 if j == 0 else ACC[par]


def post_ops(j, par, wbuf, mts):
    ops = [("w", [("xr", j, mt) for mt in range(nmt_of(j))])]
    for mt in mts:
        x0 = X0F + 4 * unit(j, mt)
        xr = XR[par] + 2 * mt
        a = acc_of(j, par) + 4 * mt
        t = TMP + 4 * (mt & 1)
        ops.append(("v", f"v_lshlrev_b32 v{t+0}, 16, v{xr}"))
        ops.append(("v", f"v_and_b32 v{t+1}, {MASK_S}, v{xr}"))
        ops.append(("v", f"v_lshlrev_b32 v{t+2}, 16, v{xr+1}"))
        ops.append(("v", f"v_and_b32 v{t+3}, {MASK_S}, v{xr+1}"))
        for r in range(4):
            ops.append(("v", f"v_fma_f32 v{a+r}, v{x0+r}, v{a+r}, v{t+r}"))
        ops.append(("v", f"v_cvt_pk_bf16_f32 v{xr}, v{a}, v{a+1}"))
        ops.append(("v", f"v_cvt_pk_bf16_f32 v{xr+1}, v{a+2}, v{a+3}"))
        ops.append(("l", f"ds_write_b64 v{V_DA[par][mt>>1]}, v[{xr}:{xr+1}] offset:{(mt&1)*RT2 + wbuf*RT}"))
    return ops


def bias_ops(j, par, bias_off):
    b = BIASR[par]
    return [("v", f"v_add_u32 v{V_BT}, s{S_BIASOFF+j}, v{V_BIAS}"),
            ("r", (f"ds_read_b128 v[{b}:{b+3}], v{V_BT} offset:{bias_off}", ("b", j)))]


class Sched:
    def __init__(self, em):
        self.em = em
        self.hi = []
        self.q = []
        self.forced = 0

    def emit(self, op):
        em = self.em
        k, s = op
        if k == "v":
            em.i(s)
        elif k == "l":
            em.lds(s, "xw")
        elif k == "r":
            em.lds(s[0], s[1])
        elif k == "w":
            assert not any(e[0] == "r" and e[1][1] in s for e in self.hi)
            assert not any(e[1][0] == "r" and e[1][1][1] in s for e in self.q)
            return em.wait(lgtag=s)
        else:
            raise ValueError(k)
        return 1

    def gap(self, cap):
        while cap > 0:
            if self.hi:
                cap -= self.emit(self.hi.pop(0))
            elif self.q and self.q[0][0] <= self.em.n:
                cap -= self.emit(self.q.pop(0)[1])
            else:
                break

    def _force_q(self):
        rdy, op = self.q.pop(0)[:2]
        d = rdy - self.em.n
        while d > 0:
            k = min(d, 8)
            self.em.i(f"s_nop {k-1}")
            self.em.n += k - 1
            d -= k
        self.emit(op)

    def ensure_tags(self, tags):
        def pending(lst, get):
            return [i for i, e in enumerate(lst) if get(e)[0] == "r" and get(e)[1][1] in tags]
        p = pending(self.hi, lambda e: e)
        if p:
            self.forced += p[-1] + 1
            for _ in range(p[-1] + 1):
                self.emit(self.hi.pop(0))
        p = pending(self.q, lambda e: e[1])
        if p:
            self.forced += p[-1] + 1
            for _ in range(p[-1] + 1):
                self._force_q()

    def ensure_post(self, slot):
        p = [i for i, e in enumerate(self.q) if len(e) > 2 and e[2] <= slot]
        if p:
            self.forced += p[-1] + 1
            for _ in range(p[-1] + 1):
                self._force_q()

    def flush(self):
        while self.hi:
            self.emit(self.hi.pop(0))
        while self.q:
            self._force_q()


LASTP = os.environ.get('LASTP', '1')


def gen_layer(em, seq0, lpar, bias_off):
    rbuf = lpar
    wbuf = 1 - lpar
    sc = Sched(em)

    def xread(s, mt):
        return ("r", (f"ds_read_b128 {xfrag(s, mt)}, v{V_XRD[mt>>1]} offset:{(mt&1)*RT2 + rbuf*RT + s*64}", ("x", s, mt)))

    def wload(par, s, va, seq):
        em.vmem(f"buffer_load_dwordx4 {wslot(par, s)}, v{va}, s[24:27], s{S_SOFFK+s} offen{os.environ.get('WPOL','')}", ("W", seq, s))

    def mfma(j, par, s, mt):
        a = acc_of(j, par) + 4 * mt
        b = BIASR[par]
        c = f"v[{b}:{b+3}]" if s == 0 else f"v[{a}:{a+3}]"
        em.i(f"v_mfma_f32_16x16x32_bf16 v[{a}:{a+3}], {wslot(par, s)}, {xfrag(s, mt)}, {c}")

    par0 = seq0 & 1
    par1 = 1 - par0
    first = (bias_ops(1, par1, bias_off) + [xread(0, mt) for mt in range(4)] + bias_ops(0, par0, bias_off)
             + [xread(s, mt) for s in range(1, KS) for mt in range(4)])
    PRE = 4 + 10
    for op in first[:PRE]:
        sc.emit(op)
    sc.hi = first[PRE:]
    sc.q = [(0, op) for op in pre_ops(0, par0, rbuf) + pre_ops(1, par1, rbuf)]
    em.i(f"s_add_u32 s33, s34, s{S_TILEOFF+2}")
    em.i(f"v_add_u32 v{V_WA}, s33, v{V_L16}")
    em.i(f"s_add_u32 s33, s34, s{S_TILEOFF+3}")
    em.i(f"v_add_u32 v{V_WB}, s33, v{V_L16}")
    for s in range(KS):
        lg = [("x", s, m) for m in range(4)]
        if s == 0:
            lg += [("b", 0), ("b", 1)]
        vt = ("W", seq0 + 1, min(s + 1, KS - 1)) if s % 2 == 0 else None
        sc.ensure_tags(lg)
        em.wait(vmtag=vt, lgtag=lg)
        order = [(1, 0), (1, 1), (0, 0), (1, 2), (0, 1), (1, 3)]
        for (j, mt) in order:
            mfma(j, par0 if j == 0 else par1, s, mt)
            cap = CAP
            if (j, mt) == (0, 1):
                wload(par0, s, V_WA, seq0 + 2)
                cap -= 1
            if (j, mt) == (1, 3):
                wload(par1, s, V_WB, seq0 + 3)
                cap -= 2
            sc.gap(cap)
        if s == 1:
            sc.q += [(0, op) for op in bias_ops(2, par0, bias_off)]
    rdy = em.n + 9
    sc.q += [(rdy, op, 0) for op in post_ops(0, par0, wbuf, [0, 1])]
    sc.q += [(rdy, op, 1) for op in post_ops(1, par1, wbuf, [0, 1, 2, 3])]
    if TSTAMP:
        em.wait(lg_all=True)
        for l in stamp_lines():
            em.raw(l)
    for j in range(2, NT):
        seq = seq0 + j
        par = seq & 1
        jn = (j + 2) % NT
        if j < 6 or LASTP == '1':
            passes = [[0, 1, 2, 3]]
        elif LASTP == '3':
            passes = [[0, 1, 2], [3]]
        else:
            passes = [[0, 1], [2, 3]]
        sc.q += [(0, op) for op in pre_ops(j, par, rbuf)]
        if j + 1 < NT:
            sc.q += [(0, op) for op in bias_ops(j + 1, 1 - par, bias_off)]
        if j >= 3:
            sc.ensure_post(j - 2)
        for pi, mts in enumerate(passes):
            lastpass = pi == len(passes) - 1
            if lastpass:
                if j + 2 == NT:
                    em.i(f"s_add_u32 s34, s34, {LAYERB}")
                em.i(f"s_add_u32 s33, s34, s{S_TILEOFF+jn}")
                em.i(f"v_add_u32 v{V_WA}, s33, v{V_L16}")
            for s in range(KS):
                lg = [("b", j)] if s == 0 else []
                vt = None
                if pi == 0 and s % 2 == 0:
                    vt = ("W", seq, min(s + 1, KS - 1))
                sc.ensure_tags(lg)
                em.wait(vmtag=vt, lgtag=lg)
                for mt in mts:
                    mfma(j, par, s, mt)
                    cap = CAP
                    if mt == mts[-1]:
                        if lastpass:
                            wload(par, s, V_WA, seq + 2)
                            cap -= 1
                        if pi == 0 and s % 2 == 1:
                            cap -= 1
                    sc.gap(cap)
            rdy = em.n + 9
            sc.q += [(rdy, op, j) for op in post_ops(j, par, wbuf, mts)]
        if TSTAMP:
            em.wait(lg_all=True)
            for l in stamp_lines():
                em.raw(l)
    if os.environ.get('VERBOSE'):
        print("forced", sc.forced, "left at end", len(sc.q), file=sys.stderr)
    sc.flush()
    em.wait(lg_all=True)
    if STAMP:
        for l in stamp_lines():
            em.raw(l)
    if not os.environ.get('NO_BAR'):
        em.i("s_barrier")
    if os.environ.get('BSTAMP'):
        for l in stamp_lines():
            em.raw(l)


def gen_main_body():
    em = Em()
    em.vm = [("W", q, s) for q in range(2) for s in range(KS)]
    em.raw("L_loop:")
    gen_layer(em, 0, 0, 0)
    gen_layer(em, NT, 1, 1664)
    assert em.vm == [("W", 2 * NT + q, s) for q in range(2) for s in range(KS)], em.vm
    assert not em.lg
    em.i(f"v_add_u32 v{V_BIAS}, {2*1664}, v{V_BIAS}")
    em.i("s_sub_u32 s35, s35, 1")
    em.i("s_cmp_lg_u32 s35, 0")
    em.i("s_cbranch_scc1 L_loop")
    em.i("s_mov_b32 exec_hi, 0x000fffff")
    for r in range(16):
        off = f" offset:{r*XSTR}" if r else ""
        em.i(f"ds_read_b128 a[{4*r}:{4*r+3}], v{V_STG}{off}")
    for r in range(16):
        if r % 4 == 0:
            em.i(f"s_waitcnt lgkmcnt({12 - r})")
        so = "0" if r < 4 else f"s{50 + (r >> 2)}"
        imm = (r & 3) * ROWB
        off = f" offset:{imm}" if imm else ""
        em.i(f"buffer_store_dwordx4 a[{4*r}:{4*r+3}], v{V_GRW}, s[20:23], {so} offen{off}")
    if STAMP:
        em.i("s_mov_b32 exec_hi, -1")
        em.i("s_waitcnt vmcnt(0)")
        for l in stamp_lines():
            em.raw(l)
        for l in stamp_lines():
            em.raw(l.replace('s_memtime', 's_memrealtime'))
    return em.lines


def gen_prologue():
    L = []
    A = L.append
    A("  s_cmp_ge_u32 s2, 256")
    A("  s_cbranch_scc1 L_main_end")
    A("  s_load_dwordx8 s[4:11], s[0:1], 0")
    A("  s_load_dwordx2 s[14:15], s[0:1], 40")
    A("  v_lshrrev_b32 v26, 6, v0")
    A("  v_and_b32 v27, 63, v0")
    A("  v_and_b32 v28, 15, v0")
    A("  v_readfirstlane_b32 s3, v26")
    A("  v_lshrrev_b32 v29, 4, v27")
    A(f"  v_lshlrev_b32 v{V_L16}, 4, v27")
    A("  s_mul_i32 s49, s3, 13312")
    A(f"  v_add_u32 v{V_GRW}, s49, v{V_L16}")
    A("  v_lshlrev_b32 v23, 2, v0")
    A("  v_add_u32 v25, 4096, v23")
    A("  s_mov_b32 s51, 3328")
    A("  s_mov_b32 s52, 6656")
    A("  s_mov_b32 s53, 9984")
    A("  s_mul_i32 s33, s2, 53248")
    A("  s_waitcnt lgkmcnt(0)")
    A("  s_add_u32 s16, s4, s33")
    A("  s_addc_u32 s17, s5, 0")
    A("  s_mov_b32 s18, 53248")
    A("  s_mov_b32 s19, 0x00020000")
    A("  s_mov_b32 s28, s8")
    A("  s_mov_b32 s29, s9")
    A("  s_mov_b32 s30, 4992")
    A("  s_mov_b32 s31, 0x00020000")
    if STAMP:
        A("  s_lshl_b32 s36, s2, 2")
        A("  s_add_u32 s36, s36, s3")
        A("  s_lshl_b32 s36, s36, 10")
        A("  s_add_u32 s36, s36, 0x400000")
        A("  s_add_u32 s56, s14, s36")
        A("  s_addc_u32 s57, s15, 0")
        A("  s_mov_b32 s58, 1024")
        A("  s_mov_b32 s59, 0x00020000")
        A("  s_mov_b32 s62, 0")
        A("  v_mov_b32 v255, 0")
        L.extend([l.replace('s_memtime', 's_memrealtime') for l in stamp_lines()])
        L.extend(stamp_lines())
    for r in range(5):
        off = f" offset:{r*1024}" if 0 < r < 4 else ""
        va = "v23" if r < 4 else "v25"
        A(f"  buffer_load_dword v{32+r}, {va}, s[28:31], 0 offen{off}")
    A("  s_mov_b32 exec_hi, 0x000fffff")
    for r in range(16):
        so = "0" if r < 4 else f"s{50 + (r >> 2)}"
        imm = (r & 3) * ROWB
        off = f" offset:{imm}" if imm else ""
        A(f"  buffer_load_dwordx4 a[{4*r}:{4*r+3}], v{V_GRW}, s[16:19], {so} offen{off}")
    A("  s_mov_b32 exec_hi, -1")
    A("  s_add_u32 s20, s10, s33")
    A("  s_addc_u32 s21, s11, 0")
    A("  s_mov_b32 s22, 53248")
    A("  s_mov_b32 s23, 0x00020000")
    A("  s_mov_b32 s24, s14")
    A("  s_mov_b32 s25, s15")
    A(f"  s_mov_b32 s26, {WF_BYTES}")
    A("  s_mov_b32 s27, 0x00020000")
    A("  s_mov_b32 s50, 0xffff0000")
    A("  s_mov_b32 s35, 3")
    A("  s_mov_b32 s34, 0")
    if NO_ROT:
        A("  s_mov_b32 s36, 0")
        A("  s_mov_b32 s37, 0")
    else:
        A("  s_lshr_b32 s38, s2, 3")
        A("  s_and_b32 s38, s38, 31")
        A("  s_mul_i32 s39, s38, 20")
        A("  s_lshr_b32 s39, s39, 8")
        A("  s_mul_i32 s39, s39, 13")
        A("  s_sub_u32 s36, s38, s39")
        A("  s_mul_i32 s39, s38, 43")
        A("  s_lshr_b32 s39, s39, 8")
        A("  s_mul_i32 s39, s39, 6")
        A("  s_sub_u32 s37, s38, s39")
        assert all((i * 20) >> 8 == i // 13 and (i * 43) >> 8 == i // 6 for i in range(32))
    for p in range(KS):
        A(f"  s_add_u32 s38, s36, {p}")
        A("  s_sub_u32 s39, s38, 13")
        A("  s_cmp_ge_u32 s38, 13")
        A("  s_cselect_b32 s38, s39, s38")
        A(f"  s_lshl_b32 s{S_SOFFK+p}, s38, 10")
    A("  s_mul_i32 s40, s3, 6")
    for j in range(NT):
        if j >= 1:
            A(f"  s_add_u32 s38, s37, {j-1}")
            A("  s_sub_u32 s39, s38, 6")
            A("  s_cmp_ge_u32 s38, 6")
            A("  s_cselect_b32 s38, s39, s38")
            A("  s_add_u32 s38, s38, s40")
        else:
            A("  s_lshr_b32 s38, s3, 1")
            A("  s_add_u32 s38, s38, 24")
        A(f"  s_mul_i32 s{S_TILEOFF+j}, s38, {TILEB}")
        A(f"  s_lshl_b32 s{S_BIASOFF+j}, s38, 6")
        A("  s_lshr_b32 s39, s38, 1")
        A("  s_add_u32 s39, s39, 13")
        A("  s_sub_u32 s39, s39, s36")
        A("  s_sub_u32 s41, s39, 13")
        A("  s_cmp_ge_u32 s39, 13")
        A("  s_cselect_b32 s39, s41, s39")
        A("  s_lshl_b32 s39, s39, 6")
        A("  s_and_b32 s38, s38, 1")
        A("  s_lshl_b32 s38, s38, 5")
        A(f"  s_add_u32 s{S_COLW+j}, s39, s38")
        if j == 1:
            A(f"  v_add_u32 v{V_WA}, s{S_TILEOFF}, v{V_L16}")
            A(f"  v_add_u32 v31, s{S_TILEOFF+1}, v{V_L16}")
            prime = [(q, s) for q in range(2) for s in range(KS)]

            def prime_load(q, s):
                va = f"v{V_WA}" if q == 0 else "v31"
                return f"  buffer_load_dwordx4 {wslot(q, s)}, {va}, s[24:27], s{S_SOFFK+s} offen"
            for (q, s) in prime[:PRIME0]:
                A(prime_load(q, s))
            rest = prime[PRIME0:]
    A(f"  v_mul_u32_u24 v16, {XSTR}, v28")
    A("  v_lshl_add_u32 v30, v29, 4, v16")
    A("  v_lshl_add_u32 v18, v29, 3, v16")
    A("  s_and_b32 s38, s3, 1")
    A(f"  s_mul_i32 s45, s38, {2*RT2}")
    A(f"  s_sub_u32 s54, {2*RT2}, s45")
    A(f"  v_add_u32 v{V_XRD[0]}, s45, v30")
    A(f"  v_add_u32 v{V_XRD[1]}, s54, v30")
    A(f"  v_add_u32 v{V_XD[0]}, s45, v18")
    A(f"  v_add_u32 v{V_XD[1]}, s54, v18")
    A("  v_lshlrev_b32 v20, 4, v29")
    A(f"  v_add_u32 v{V_BIAS}, {BIAS_LDS}, v20")
    A("  v_lshrrev_b32 v17, 2, v27")
    A("  v_add_u32 v17, 13, v17")
    A("  v_subrev_u32 v17, s36, v17")
    A("  v_subrev_u32 v19, 13, v17")
    A("  v_cmp_le_u32 vcc, 13, v17")
    A("  s_nop 1")
    A("  v_cndmask_b32 v17, v17, v19, vcc")
    A("  v_and_b32 v19, 3, v27")
    A("  v_lshlrev_b32 v19, 4, v19")
    A("  v_lshl_add_u32 v17, v17, 6, v19")
    A(f"  s_mul_i32 s49, s3, {RT2}")
    A(f"  v_add_u32 v{V_STG}, s49, v17")
    A("  v_lshlrev_b32 v24, 3, v0")
    A(f"  v_add_u32 v24, {BIAS_LDS}, v24")
    ex = 0
    if STAMP:
        L.extend(stamp_lines())
        ex = 1
    A(f"  s_waitcnt vmcnt({16+PRIME0+ex})")
    for r in range(5):
        A(f"  v_lshlrev_b32 v{40+2*r}, 16, v{32+r}")
        A(f"  v_and_b32 v{41+2*r}, s50, v{32+r}")
        off = f" offset:{r*2048}" if r else ""
        A(f"  ds_write_b64 v24, v[{40+2*r}:{41+2*r}]{off}")
    A("  s_mov_b32 exec_hi, 0x000fffff")
    for r in range(16):
        if r % 2 == 0:
            A(f"  s_waitcnt vmcnt({14-r+PRIME0+ex})")
        off = f" offset:{r*XSTR}" if r else ""
        A(f"  ds_write_b128 v{V_STG}, a[{4*r}:{4*r+3}]{off}")
    A("  s_mov_b32 exec_hi, -1")
    if STAMP:
        L.extend(stamp_lines())
    A("  s_waitcnt lgkmcnt(0)")
    if STAMP:
        L.extend(stamp_lines())
    A("  s_barrier")
    def unpack(u):
        x = X0F + 4 * u
        A(f"  v_lshlrev_b32 v{x}, 16, v{x+2}")
        A(f"  v_and_b32 v{x+1}, s50, v{x+2}")
        A(f"  v_lshlrev_b32 v{x+2}, 16, v{x+3}")
        A(f"  v_and_b32 v{x+3}, s50, v{x+3}")
    issued = 0
    done = 0
    for j in range(NT):
        A(f"  v_add_u32 v{V_DA[0][0]}, s{S_COLW+j}, v{V_XD[0]}")
        if nmt_of(j) == 4:
            A(f"  v_add_u32 v{V_DA[0][1]}, s{S_COLW+j}, v{V_XD[1]}")
        for mt in range(nmt_of(j)):
            x = X0F + 4 * unit(j, mt)
            assert unit(j, mt) == issued
            off = f" offset:{RT2}" if (mt & 1) else ""
            A(f"  ds_read_b64 v[{x+2}:{x+3}], v{V_DA[0][mt>>1]}{off}")
            issued += 1
        for _ in range(4):
            if rest:
                A(prime_load(*rest.pop(0)))
        if issued - done >= 12:
            A(f"  s_waitcnt lgkmcnt({issued - done - 4})")
            for u in range(done, done + 4):
                unpack(u)
            done += 4
    assert not rest
    while done < 26:
        n = min(4, 26 - done)
        A(f"  s_waitcnt lgkmcnt({26 - done - n})")
        for u in range(done, done + n):
            unpack(u)
        done += n
    if STAMP:
        L.extend(stamp_lines())
    return L


def magic(d, maxn):
    for sh in range(8, 31):
        m = -(-(1 << sh) // d)
        if all((n * m) >> sh == n // d for n in range(maxn)) and maxn * m < (1 << 32):
            return m, sh
    raise ValueError


def gen_prep():
    L = []
    A = L.append
    A(f"  s_cmp_ge_u32 s2, {PREP_WG}")
    A("  s_cbranch_scc1 L_prep_end")
    A("  s_load_dwordx4 s[4:7], s[0:1], 0")
    A("  s_load_dwordx2 s[8:9], s[0:1], 40")
    A("  v_lshrrev_b32 v1, 6, v0")
    A("  v_and_b32 v2, 63, v0")
    A("  v_and_b32 v3, 15, v0")
    A("  v_readfirstlane_b32 s3, v1")
    A("  v_lshrrev_b32 v4, 4, v2")
    A(f"  s_mul_i32 s10, s2, {PREP_WPB}")
    A("  s_add_u32 s10, s10, s3")
    m, sh = magic(26 * 13, NFRAG + 16)
    A(f"  s_mul_i32 s11, s10, {m}")
    A(f"  s_lshr_b32 s11, s11, {sh}")
    A(f"  s_mul_i32 s12, s11, {26*13}")
    A("  s_sub_u32 s12, s10, s12")
    m, sh = magic(13, 26 * 13)
    A(f"  s_mul_i32 s13, s12, {m}")
    A(f"  s_lshr_b32 s13, s13, {sh}")
    A("  s_mul_i32 s14, s13, 13")
    A("  s_sub_u32 s14, s12, s14")
    A("  s_mul_i32 s17, s11, 346112")
    A(f"  s_mul_i32 s18, s14, {32*ROWB}")
    A("  s_add_u32 s17, s17, s18")
    A("  s_lshl_b32 s18, s13, 5")
    A("  s_add_u32 s17, s17, s18")
    A(f"  v_mul_u32_u24 v5, {8*ROWB}, v4")
    A("  v_lshl_add_u32 v5, v3, 1, v5")
    A(f"  v_add_u32 v6, {4*ROWB}, v5")
    A("  v_lshlrev_b32 v7, 4, v2")
    A("  s_lshl_b32 s19, s10, 10")
    A("  s_waitcnt lgkmcnt(0)")
    A("  s_mov_b32 s20, s6")
    A("  s_mov_b32 s21, s7")
    A(f"  s_mov_b32 s22, {6*346112}")
    A("  s_mov_b32 s23, 0x00020000")
    A("  s_mov_b32 s24, s8")
    A("  s_mov_b32 s25, s9")
    A(f"  s_mov_b32 s26, {WF_BYTES}")
    A("  s_mov_b32 s27, 0x00020000")
    for jj in range(8):
        va = "v5" if jj < 4 else "v6"
        imm = (jj & 3) * ROWB
        off = f" offset:{imm}" if imm else ""
        A(f"  buffer_load_ushort v{16 + jj}, {va}, s[20:23], s17 offen{off}")
    npf = 0
    if not NO_PREFETCH:
        A("  s_mov_b32 s28, s4")
        A("  s_mov_b32 s29, s5")
        A(f"  s_mov_b32 s30, {16384*ROWB}")
        A("  s_mov_b32 s31, 0x00020000")
        A("  s_mul_i32 s15, s10, 7168")
        A("  s_add_u32 s16, s15, 4096")
        npf = 7
        for q in range(npf):
            so = "s15" if q < 4 else "s16"
            imm = (q & 3) * 1024
            off = f" offset:{imm}" if imm else ""
            A(f"  buffer_load_dwordx4 v[{24+4*q}:{27+4*q}], v7, s[28:31], {so} offen{off}")
    A(f"  s_waitcnt vmcnt({npf})")
    for q in range(4):
        A(f"  v_lshl_or_b32 v{8+q}, v{17+2*q}, 16, v{16+2*q}")
    A("  buffer_store_dwordx4 v[8:11], v7, s[24:27], s19 offen")
    A("L_prep_end:")
    A("  s_endpgm")
    return L


HEADER = open('standalone__cross_network_dcn__recsys.s.ref').read().split('; Override')[0]


def main(out):
    o = []
    o.append(HEADER.rstrip('\n'))
    o.append(f"; @launch kernel=dcn_prep_kernel grid=({PREP_WG},1,1) block=({PREP_BLOCK},1,1) lds=0")
    o.append(f"; @launch kernel=standalone__cross_network_dcn__recsys_kernel grid=(256,1,1) block=(256,1,1) lds={LDS_TOTAL}")
    o.append('.amdgcn_target "amdgcn-amd-amdhsa--gfx950"')
    o.append(".text")
    o.append(".globl dcn_prep_kernel")
    o.append(".p2align 8")
    o.append(".type dcn_prep_kernel,@function")
    o.append("dcn_prep_kernel:")
    o += gen_prep()
    o.append(".globl standalone__cross_network_dcn__recsys_kernel")
    o.append(".p2align 8")
    o.append(".type standalone__cross_network_dcn__recsys_kernel,@function")
    o.append("standalone__cross_network_dcn__recsys_kernel:")
    o += gen_prologue()
    o += gen_main_body()
    o.append("L_main_end:")
    o.append("  s_endpgm")
    o.append('.section .rodata,"a"')
    o.append(".p2align 6")
    o.append(""".amdhsa_kernel dcn_prep_kernel
  .amdhsa_next_free_vgpr 56
  .amdhsa_next_free_sgpr 32
  .amdhsa_accum_offset 56
  .amdhsa_group_segment_fixed_size 0
  .amdhsa_kernarg_size 48
  .amdhsa_user_sgpr_count 2
  .amdhsa_user_sgpr_kernarg_segment_ptr 1
  .amdhsa_system_sgpr_workgroup_id_x 1
.end_amdhsa_kernel
.p2align 6
.amdhsa_kernel standalone__cross_network_dcn__recsys_kernel
  .amdhsa_next_free_vgpr 512
  .amdhsa_next_free_sgpr 102
  .amdhsa_accum_offset 256
  .amdhsa_group_segment_fixed_size 0
  .amdhsa_kernarg_size 48
  .amdhsa_user_sgpr_count 2
  .amdhsa_user_sgpr_kernarg_segment_ptr 1
  .amdhsa_system_sgpr_workgroup_id_x 1
.end_amdhsa_kernel""")
    open(out, 'w').write("\n".join(o) + "\n")


if __name__ == "__main__":
    main(sys.argv[1] if len(sys.argv) > 1 else 'standalone__cross_network_dcn__recsys.s')
```
